```python
import torch

def _softmax(x, axis=-1):
    return torch.softmax(x, dim=axis)
def _gelu(x):
    return torch.nn.functional.gelu(x, approximate="tanh")
def _silu(x):
    return torch.nn.functional.silu(x)
def _sigmoid(x):
    return torch.sigmoid(x)
def _layernorm(x, axis=-1, eps=1e-5):
    m = x.mean(dim=axis, keepdim=True)
    v = x.var(dim=axis, keepdim=True, unbiased=False)
    return (x - m) / torch.sqrt(v + eps)
def _scatter_add(tgt, idx, src, axis=0):
    return tgt.clone().index_add_(axis, idx, src)
def _segment_sum(src, seg, n):
    out = torch.zeros((n,) + src.shape[1:], dtype=src.dtype)
    return out.index_add_(0, seg, src)
def _pad(x, pw):
    flat = tuple(v for pair in reversed(pw) for v in pair)
    return torch.nn.functional.pad(x, flat)

kernel_name = 'standalone__kv_cache_quant_int4_int2_kv_with_per_channel_or_per_token_scales__decode'

def setup_inputs():

    _w = (lambda a: (lambda t: t.to(torch.bfloat16) if t.is_floating_point() else t)(torch.as_tensor(a)))
    B = 1
    Sq = 1
    Skv = 32768
    Hq = 32
    Hkv = 8
    Dh = 128
    bits = 4
    G = -1
    if G <= 0 or G >= Skv:
        G = max(1, Skv // 2)
    Skv = (Skv // G) * G
    ngk = Skv // G
    qmax = (1 << bits) - 1
    return {
        "q": _w((lambda *s: torch.randn(*s, dtype=torch.bfloat16) * 1.6)(B, Hq, Sq, Dh)),
        "qk": _w(torch.randint(0, qmax + 1, (B, Hkv, Skv, Dh)).to(torch.int32)),
        "qv": _w(torch.randint(0, qmax + 1, (B, Hkv, Skv, Dh)).to(torch.int32)),
        "k_scales": _w(torch.abs((lambda *s: torch.randn(*s, dtype=torch.bfloat16) * 1.6)(B, Hkv, ngk, Dh)) * 0.05 + 0.02),
        "k_zeros": _w((lambda *s: torch.randn(*s, dtype=torch.bfloat16) * 1.6)(B, Hkv, ngk, Dh) + float(qmax) / 2.0),
        "v_scales": _w(torch.abs((lambda *s: torch.randn(*s, dtype=torch.bfloat16) * 0.05)(B, Hkv, Skv, 1)) * 0.05 + 0.02),
        "v_zeros": _w((lambda *s: torch.randn(*s, dtype=torch.bfloat16) * 0.05)(B, Hkv, Skv, 1) + float(qmax) / 2.0),
    }

def reference(q, qk, qv, k_scales, k_zeros, v_scales, v_zeros):
    B, Hq, Sq, Dh = q.shape
    Hkv, Skv = qk.shape[1], qk.shape[2]
    ngk = k_scales.shape[2]
    G = Skv // ngk
    ks = (lambda x, n, axis: torch.repeat_interleave(x, n, dim=axis))(k_scales, G, axis=2)
    kz = (lambda x, n, axis: torch.repeat_interleave(x, n, dim=axis))(k_zeros, G, axis=2)
    k = ((lambda x, dt: x.to(dt))(qk, q.dtype) - kz) * ks
    v = ((lambda x, dt: x.to(dt))(qv, q.dtype) - v_zeros) * v_scales
    rep = Hq // Hkv
    if rep > 1:
        k = (lambda x, n, axis: torch.repeat_interleave(x, n, dim=axis))(k, rep, axis=1)
        v = (lambda x, n, axis: torch.repeat_interleave(x, n, dim=axis))(v, rep, axis=1)
    scale = float(Dh) ** -0.5
    logits = torch.einsum("bhqd,bhkd->bhqk", q, k) * scale
    p = _softmax(logits, axis=-1)
    o = torch.einsum("bhqk,bhkd->bhqd", p, v)
    return o
```

```python
import sys, math, struct
NAME = "standalone__kv_cache_quant_int4_int2_kv_with_per_channel_or_per_token_scales__decode"
HEADER = open("cdna_kernels/" + NAME + ".s.ref").read().split("; Override launch geometry")[0]

def f32bits(x):
    return struct.unpack("<I", struct.pack("<f", x))[0]

def gen(x=False, itpos=4, ph=0, flags="nt", stamp=False, combine="last"):
    NWG, W, NIT = 256, 4, 8
    L = []
    A = L.append
    LDS = 16640
    A(HEADER.rstrip("\n"))
    A(f"; @launch grid=({NWG},1,1) block=(256,1,1) lds={LDS}")
    A('.amdgcn_target "amdgcn-amd-amdhsa--gfx950"')
    A(".text")
    A(f".globl {NAME}_kernel")
    A(".p2align 8")
    A(f".type {NAME}_kernel,@function")
    A(f"{NAME}_kernel:")
    LANE, KOFF, VOFF, SOFF, MLANE, M, LS, CORR = 1, 2, 3, 4, 5, 6, 7, 8
    T0, T1, T2, T3, T4, T5, T6 = 9, 10, 11, 12, 13, 14, 15
    QS = 16
    ACC = 32
    Z = 64
    D = 68
    PA = 76
    VS = 80
    VZ = 84
    VSF = 88
    VP = 96
    KB = 128
    VB = 192
    sW, sH, sI, sJ, sKV, sS, sIT, sT = 24, 25, 26, 27, 28, 29, 30, 31
    sC, sPERM, sMASK, sBASE, sPH, sREC, sT2 = 52, 53, 54, 55, 56, 57, 58
    KSRD, VSRD, SSRD, ZSRD, WSRD = "s[32:35]", "s[36:39]", "s[40:43]", "s[44:47]", "s[48:51]"
    C = math.log2(math.e) / math.sqrt(128.0)

    A(f"  s_cmp_ge_u32 s2, {NWG}")
    A("  s_cbranch_scc1 L_end")
    A("  s_load_dwordx16 s[4:19], s[0:1], 0")
    A("  s_load_dwordx4 s[20:23], s[0:1], 64")
    if stamp:
        A("  s_memrealtime s[60:61]")
    A(f"  v_lshrrev_b32 v{T0}, 6, v0")
    A(f"  v_and_b32 v{LANE}, 63, v0")
    A(f"  v_readfirstlane_b32 s{sW}, v{T0}")
    A(f"  v_and_b32 v{T1}, 15, v{LANE}")
    A(f"  v_lshrrev_b32 v{T2}, 4, v{LANE}")
    if x:
        A(f"  s_and_b32 s{sH}, s2, 7")
        A(f"  s_lshr_b32 s{sI}, s2, 3")
    else:
        A(f"  s_lshr_b32 s{sH}, s2, 5")
        A(f"  s_and_b32 s{sI}, s2, 31")
    A(f"  v_lshrrev_b32 v{T3}, 2, v{T1}")
    A(f"  v_and_b32 v{T4}, 3, v{T1}")
    A(f"  v_lshl_add_u32 v{T3}, v{T3}, 3, v{T4}")
    A(f"  v_lshlrev_b32 v{SOFF}, 4, v{T2}")
    A(f"  v_lshl_add_u32 v{KOFF}, v{T3}, 9, v{SOFF}")
    A(f"  v_lshlrev_b32 v{T3}, 4, v{T1}")
    A(f"  v_lshl_add_u32 v{VOFF}, v{T2}, 12, v{T3}")
    A(f"  s_lshl_b32 s{sJ}, s{sW}, 5")
    A(f"  s_add_u32 s{sJ}, s{sJ}, s{sI}")
    A(f"  s_and_b32 s{sT}, s{sJ}, {(1 << itpos) - 1}")
    A(f"  s_lshr_b32 s{sT2}, s{sJ}, {itpos}")
    A(f"  s_lshl_b32 s{sT2}, s{sT2}, {itpos + 3}")
    A(f"  s_or_b32 s{sT}, s{sT}, s{sT2}")
    A(f"  s_lshl_b32 s{sBASE}, s{sT}, 14")
    A(f"  s_lshl_b32 s{sT}, s{sH}, 24")
    A(f"  s_add_u32 s{sBASE}, s{sBASE}, s{sT}")
    A(f"  s_mul_i32 s{sPH}, s{sH}, {ph}")
    A(f"  s_mov_b32 s{sIT}, 0")
    assert itpos <= 6
    A(f"  s_lshl_b32 s{sT}, s{sH}, 10")
    A(f"  v_lshl_add_u32 v{T5}, v{LANE}, 2, s{sT}")
    A(f"  s_lshl_b32 s{sT}, s{sH}, 9")
    A(f"  s_lshr_b32 s{sT2}, s{sW}, 1")
    A(f"  s_lshl_b32 s{sT2}, s{sT2}, 8")
    A(f"  s_add_u32 s{sT}, s{sT}, s{sT2}")
    A(f"  v_lshl_add_u32 v{T6}, v{LANE}, 2, s{sT}")
    def setoffs():
        A(f"  s_add_u32 s{sT}, s{sIT}, s{sPH}")
        A(f"  s_and_b32 s{sT}, s{sT}, 7")
        A(f"  s_lshl_b32 s{sT}, s{sT}, {14 + itpos}")
        A(f"  s_add_u32 s{sKV}, s{sT}, s{sBASE}")
        A(f"  s_lshr_b32 s{sS}, s{sKV}, 8")
    setoffs()
    A("  s_mov_b32 s34, 0x8000000"); A("  s_mov_b32 s35, 0x20000")
    A("  s_mov_b32 s38, 0x8000000"); A("  s_mov_b32 s39, 0x20000")
    A("  s_mov_b32 s42, 0x80000"); A("  s_mov_b32 s43, 0x20000")
    A("  s_mov_b32 s46, 0x80000"); A("  s_mov_b32 s47, 0x20000")
    A("  s_mov_b32 s50, 0x100000"); A("  s_mov_b32 s51, 0x20000")
    A("  s_waitcnt lgkmcnt(0)")
    A("  s_mov_b32 s32, s6"); A("  s_mov_b32 s33, s7")
    A("  s_mov_b32 s36, s8"); A("  s_mov_b32 s37, s9")
    Q0 = VP
    KS, KZ = VP + 4, VP + 5
    for h in range(4):
        A(f"  global_load_dword v{Q0+h}, v{T5}, s[4:5] offset:{256*h}")
    A(f"  global_load_dword v{KS}, v{T6}, s[10:11]")
    A(f"  global_load_dword v{KZ}, v{T6}, s[12:13]")
    A("  s_mov_b32 s40, s14"); A("  s_mov_b32 s41, s15")
    A("  s_mov_b32 s44, s16"); A("  s_mov_b32 s45, s17")
    A("  s_mov_b32 s48, s22"); A("  s_mov_b32 s49, s23")
    def burst():
        for T in range(2):
            for i in range(8):
                b = KB + 4 * (8 * T + i)
                A(f"  buffer_load_dwordx4 v[{b}:{b+3}], v{KOFF}, {KSRD}, s{sKV} offen offset:{2048*T + 64*i} {flags}")
        A(f"  buffer_load_dwordx4 v[{VS}:{VS+3}], v{SOFF}, {SSRD}, s{sS} offen")
        A(f"  buffer_load_dwordx4 v[{VZ}:{VZ+3}], v{SOFF}, {ZSRD}, s{sS} offen")
        for dh in range(2):
            for j in range(8):
                b = VB + 4 * (8 * dh + j)
                A(f"  buffer_load_dwordx4 v[{b}:{b+3}], v{VOFF}, {VSRD}, s{sKV} offen offset:{512*j + 256*dh} {flags}")
    burst()
    A(f"  s_mov_b32 s{sC}, {f32bits(C):#x}")
    A(f"  s_mov_b32 s{sPERM}, 0x07060302")
    A(f"  s_mov_b32 s{sMASK}, 0xffff0000")
    A(f"  s_lshl_b32 s{sT2}, s{sW}, 12")
    A(f"  s_lshl_b32 s{sREC}, s{sH}, 5")
    A(f"  s_add_u32 s{sREC}, s{sREC}, s{sI}")
    A(f"  s_lshl_b32 s{sREC}, s{sREC}, 12")
    A(f"  v_bfe_i32 v{MLANE}, v{LANE}, 2, 1")
    A(f"  v_and_b32 v{MLANE}, s{sMASK}, v{MLANE}")
    A(f"  v_mov_b32 v{M}, 0xff800000")
    A(f"  v_mov_b32 v{LS}, 0")
    for r in range(36):
        A(f"  v_mov_b32 v{ACC+r}, 0")
    A(f"  v_lshl_add_u32 v{T3}, v{T2}, 6, s{sT2}")
    A(f"  v_bfe_u32 v{T4}, v{LANE}, 1, 2")
    A(f"  v_lshl_add_u32 v{T3}, v{T4}, 4, v{T3}")
    A(f"  v_bfe_u32 v{T4}, v{LANE}, 3, 1")
    A(f"  v_lshl_add_u32 v{T3}, v{T4}, 3, v{T3}")
    A(f"  v_and_b32 v{T4}, 1, v{LANE}")
    A(f"  v_lshl_add_u32 v{T3}, v{T4}, 2, v{T3}")
    A(f"  v_add_u32 v{T4}, s{sT2}, v{SOFF}")
    A(f"  v_and_b32 v{T0}, 7, v{LANE}")
    A(f"  v_lshl_add_u32 v{T0}, v{T0}, 8, v{T4}")
    A("  s_waitcnt vmcnt(34)")
    KS0, KS1 = VP + 6, VP + 7
    A(f"  v_lshlrev_b32 v{KS0}, 16, v{KS}")
    A(f"  v_and_b32 v{KS1}, s{sMASK}, v{KS}")
    A(f"  ds_write_b32 v{T3}, v{KZ} offset:2048")
    for h in range(4):
        a0, a1, hi, h0, h1 = VP + 8 + 5 * h, VP + 9 + 5 * h, VP + 10 + 5 * h, VP + 11 + 5 * h, VP + 12 + 5 * h
        A(f"  v_lshlrev_b32 v{a0}, 16, v{Q0+h}")
        A(f"  v_and_b32 v{a1}, s{sMASK}, v{Q0+h}")
        A(f"  v_mul_f32 v{a0}, v{a0}, v{KS0}")
        A(f"  v_mul_f32 v{a1}, v{a1}, v{KS1}")
        A(f"  v_cvt_pk_bf16_f32 v{hi}, v{a0}, v{a1}")
        A(f"  v_lshlrev_b32 v{h0}, 16, v{hi}")
        A(f"  v_and_b32 v{h1}, s{sMASK}, v{hi}")
        A(f"  ds_write_b32 v{T3}, v{hi} offset:{256*h}")
        A(f"  v_sub_f32 v{a0}, v{a0}, v{h0}")
        A(f"  v_sub_f32 v{a1}, v{a1}, v{h1}")
        A(f"  v_cvt_pk_bf16_f32 v{a0}, v{a0}, v{a1}")
        A(f"  ds_write_b32 v{T3}, v{a0} offset:{1024 + 256*h}")
    A("  s_waitcnt lgkmcnt(0)")
    for s in range(4):
        A(f"  ds_read_b128 v[{QS+4*s}:{QS+4*s+3}], v{T0} offset:{64*s}")
    for s in range(4):
        A(f"  ds_read_b128 v[{VP+4*s}:{VP+4*s+3}], v{T4} offset:{2048 + 64*s}")
    A("  s_waitcnt lgkmcnt(0)")
    for s in range(4):
        A(f"  v_mfma_f32_16x16x32_bf16 v[{D}:{D+3}], v[{VP+4*s}:{VP+4*s+3}], v[{QS+4*s}:{QS+4*s+3}], {'0' if s == 0 else f'v[{D}:{D+3}]'}")
    A("  s_nop 7")
    A(f"  v_add_f32_dpp v{CORR}, v{D}, v{D} row_ror:4 row_mask:0xf bank_mask:0xf")
    A("  s_branch L_body")
    A("L_loop:")
    setoffs()
    burst()
    A("L_body:")
    NLD = 34
    pend = None
    for T in range(2):
        for s in range(4):
            a = KB + 4 * (8 * T + 2 * s)
            b = a + 4
            A(f"  s_waitcnt vmcnt({NLD - (8*T + 2*s + 1)})")
            for e in range(4):
                A(f"  v_cvt_f32_i32 v{a+e}, v{a+e}")
                if e == 1 and pend:
                    A(pend); pend = None
            A(f"  v_cvt_pk_bf16_f32 v{a}, v{a}, v{a+1}")
            A(f"  v_cvt_pk_bf16_f32 v{a+1}, v{a+2}, v{a+3}")
            A(f"  s_waitcnt vmcnt({NLD - (8*T + 2*s + 2)})")
            for e in range(4):
                A(f"  v_cvt_f32_i32 v{b+e}, v{b+e}")
            A(f"  v_cvt_pk_bf16_f32 v{a+2}, v{b}, v{b+1}")
            A(f"  v_cvt_pk_bf16_f32 v{a+3}, v{b+2}, v{b+3}")
            d = D + 4 * T
            pend = f"  v_mfma_f32_16x16x32_bf16 v[{d}:{d+3}], v[{a}:{a+3}], v[{QS+4*s}:{QS+4*s+3}], {'0' if s == 0 else f'v[{d}:{d+3}]'}"
    A(f"  s_waitcnt vmcnt({NLD - 18})")
    A(f"  v_lshlrev_b32 v{VSF}, 16, v{VS}")
    A(pend); pend = None
    A(f"  v_and_b32 v{VSF+1}, s{sMASK}, v{VS}")
    for r in range(1, 4):
        A(f"  v_lshlrev_b32 v{VSF+2*r}, 16, v{VS+r}")
        A(f"  v_and_b32 v{VSF+2*r+1}, s{sMASK}, v{VS+r}")
    for j in range(8):
        A(f"  v_add_f32_dpp v{D+j}, v{D+j}, v{D+j} row_ror:4 row_mask:0xf bank_mask:0xf")
    A(f"  v_max3_f32 v{T0}, v{D}, v{D+1}, v{D+2}")
    A(f"  v_max3_f32 v{T1}, v{D+3}, v{D+4}, v{D+5}")
    A(f"  v_max3_f32 v{T0}, v{T0}, v{D+6}, v{D+7}")
    A(f"  v_max_f32 v{T0}, v{T0}, v{T1}")
    A(f"  v_mov_b32 v{T1}, v{T0}")
    A("  s_nop 1")
    A(f"  v_permlane32_swap_b32 v{T1}, v{T0}")
    A(f"  v_max_f32 v{T0}, v{T0}, v{T1}")
    A(f"  v_mov_b32 v{T1}, v{T0}")
    A("  s_nop 1")
    A(f"  v_permlane16_swap_b32 v{T1}, v{T0}")
    A(f"  v_max_f32 v{T0}, v{T0}, v{T1}")
    A(f"  v_mul_f32 v{T0}, s{sC}, v{T0}")
    A(f"  v_max_f32 v{T0}, v{T0}, v{M}")
    A(f"  v_sub_f32 v{T1}, v{M}, v{T0}")
    A(f"  v_mov_b32 v{M}, v{T0}")
    A(f"  v_exp_f32 v{T1}, v{T1}")
    for j in range(8):
        A(f"  v_fma_f32 v{D+j}, v{D+j}, s{sC}, -v{M}")
    for j in range(8):
        A(f"  v_exp_f32 v{D+j}, v{D+j}")
    A(f"  v_mul_f32 v{LS}, v{LS}, v{T1}")
    A(f"  v_add_f32 v{T2}, v{D}, v{D+1}")
    A(f"  v_add_f32 v{T3}, v{D+2}, v{D+3}")
    A(f"  v_add_f32 v{T4}, v{D+4}, v{D+5}")
    A(f"  v_add_f32 v{T5}, v{D+6}, v{D+7}")
    for j in range(8):
        A(f"  v_mul_f32 v{D+j}, v{D+j}, v{VSF+j}")
    A(f"  v_add_f32 v{T2}, v{T2}, v{T3}")
    A(f"  v_add_f32 v{T4}, v{T4}, v{T5}")
    for j in range(8):
        A(f"  v_and_b32 v{VSF+j}, v{MLANE}, v{D+j}")
    A(f"  v_add_f32 v{LS}, v{LS}, v{T2}")
    for j in range(8):
        A(f"  v_sub_f32 v{D+j}, v{D+j}, v{VSF+j}")
    A(f"  v_add_f32 v{LS}, v{LS}, v{T4}")
    for r in range(4):
        A(f"  v_perm_b32 v{PA+r}, v{D+2*r+1}, v{D+2*r}, s{sPERM}")
    for r in range(36):
        i = r % 4
        A(f"  v_mul_f32_dpp v{ACC+r}, v{T1}, v{ACC+r} quad_perm:[{i},{i},{i},{i}] row_mask:0xf bank_mask:0xf")
    A("  s_nop 1")
    A(f"  v_mfma_f32_16x16x32_bf16 v[{Z}:{Z+3}], v[{PA}:{PA+3}], v[{VZ}:{VZ+3}], v[{Z}:{Z+3}]")
    pend = []
    for dh in range(2):
        for r in range(4):
            a = VB + 4 * (8 * dh + 2 * r)
            b = a + 4
            A(f"  s_waitcnt vmcnt({NLD - (18 + 8*dh + 2*r + 1)})")
            for e in range(4):
                A(f"  v_cvt_f32_i32 v{a+e}, v{a+e}")
                if e >= 1 and pend:
                    A(pend.pop(0))
            A(f"  s_waitcnt vmcnt({NLD - (18 + 8*dh + 2*r + 2)})")
            for e in range(4):
                A(f"  v_cvt_f32_i32 v{b+e}, v{b+e}")
                if pend:
                    A(pend.pop(0))
            for c in range(4):
                A(f"  v_cvt_pk_bf16_f32 v{VP+16*dh+4*c+r}, v{a+c}, v{b+c}")
        for c in range(4):
            ac = ACC + 16 * dh + 4 * c
            vp = VP + 16 * dh + 4 * c
            pend.append(f"  v_mfma_f32_16x16x32_bf16 v[{ac}:{ac+3}], v[{PA}:{PA+3}], v[{vp}:{vp+3}], v[{ac}:{ac+3}]")
    A(f"  s_add_u32 s{sIT}, s{sIT}, 1")
    A(f"  s_cmp_lg_u32 s{sIT}, {NIT}")
    for p in pend:
        A(p)
    A("  s_cbranch_scc1 L_loop")
    if stamp:
        A("  s_memrealtime s[62:63]")
    A(f"  v_mov_b32 v{T1}, v{LS}")
    A(f"  v_fma_f32 v{M}, v{CORR}, -s{sC}, v{M}")
    A(f"  s_lshl_b32 s{sT2}, s{sW}, 12")
    A(f"  v_permlane32_swap_b32 v{T1}, v{LS}")
    A(f"  v_add_f32 v{LS}, v{LS}, v{T1}")
    A(f"  v_mov_b32 v{T1}, v{LS}")
    A(f"  v_and_b32 v{T2}, 15, v{LANE}")
    A(f"  v_lshlrev_b32 v{T2}, 4, v{T2}")
    A(f"  v_permlane16_swap_b32 v{T1}, v{LS}")
    A(f"  v_add_f32 v{LS}, v{LS}, v{T1}")
    A(f"  v_lshl_add_u32 v{T2}, v{SOFF}, 7, v{T2}")
    A(f"  v_add_u32 v{T2}, s{sT2}, v{T2}")
    A(f"  s_lshl_b32 s{sT}, s{sW}, 2")
    A(f"  s_add_u32 s{sT}, s{sT}, 16384")
    A(f"  v_lshl_add_u32 v{T3}, v{LANE}, 4, s{sT}")
    TR = KB
    for dh in range(2):
        for i in range(4):
            for c in range(4):
                A(f"  v_sub_f32 v{TR+16*dh+4*i+c}, v{ACC+16*dh+4*c+i}, v{Z+i}")
    A("  s_mov_b32 exec_hi, 0")
    for dh in range(2):
        for i in range(4):
            t = TR + 16 * dh + 4 * i
            A(f"  ds_write_b128 v{T2}, v[{t}:{t+3}] offset:{512*i + 256*dh}")
    A("  s_mov_b64 exec, 15")
    A(f"  ds_write_b32 v{T3}, v{M}")
    A(f"  ds_write_b32 v{T3}, v{LS} offset:64")
    A("  s_mov_b64 exec, -1")
    A(f"  s_lshl_b32 s{sT}, s{sW}, 9")
    A(f"  v_lshl_add_u32 v{T4}, v{LANE}, 3, s{sT}")
    A(f"  s_lshl_b32 s{sT}, s{sW}, 4")
    A(f"  v_mov_b32 v{T5}, s{sT}")
    A("  s_waitcnt lgkmcnt(0)")
    A("  s_barrier")
    MW, LW, DAT = VP, VP + 4, VP + 8
    A(f"  ds_read_b128 v[{MW}:{MW+3}], v{T5} offset:16384")
    A(f"  ds_read_b128 v[{LW}:{LW+3}], v{T5} offset:16448")
    for w in range(4):
        for xx in range(2):
            t = DAT + 4 * w + 2 * xx
            A(f"  ds_read_b64 v[{t}:{t+1}], v{T4} offset:{4096*w + 2048*xx}")
    A("  s_waitcnt lgkmcnt(8)")
    A(f"  v_max3_f32 v{T0}, v{MW}, v{MW+1}, v{MW+2}")
    A(f"  v_max_f32 v{T0}, v{T0}, v{MW+3}")
    for w in range(4):
        A(f"  v_sub_f32 v{MW+w}, v{MW+w}, v{T0}")
    for w in range(4):
        A(f"  v_exp_f32 v{MW+w}, v{MW+w}")
    A("  s_nop 0")
    A(f"  v_mul_f32 v{T1}, v{MW}, v{LW}")
    for w in range(1, 4):
        A(f"  v_fmac_f32 v{T1}, v{MW+w}, v{LW+w}")
    A("  s_waitcnt lgkmcnt(0)")
    for w in range(4):
        t = DAT + 4 * w
        A(f"  v_add_f32 v{t}, v{t}, v{t+2}")
        A(f"  v_add_f32 v{t+1}, v{t+1}, v{t+3}")
    O0 = D
    A(f"  v_mul_f32 v{O0}, v{MW}, v{DAT}")
    A(f"  v_mul_f32 v{O0+1}, v{MW}, v{DAT+1}")
    for w in range(1, 4):
        A(f"  v_fmac_f32 v{O0}, v{MW+w}, v{DAT+4*w}")
        A(f"  v_fmac_f32 v{O0+1}, v{MW+w}, v{DAT+4*w+1}")
    A(f"  v_mov_b32 v{O0+2}, v{T0}")
    A(f"  v_mov_b32 v{O0+3}, v{T1}")
    A(f"  v_lshrrev_b32 v{T5}, 1, v{T5}")
    A(f"  buffer_store_dwordx2 v[{O0}:{O0+1}], v{T4}, {WSRD}, s{sREC} offen sc1")
    A("  s_mov_b64 exec, 1")
    A(f"  buffer_store_dwordx2 v[{O0+2}:{O0+3}], v{T5}, {WSRD}, s{sREC} offen offset:2048 sc1")
    A("  s_mov_b64 exec, -1")
    if combine == "last":
        A("  s_waitcnt vmcnt(0)")
        A("  s_barrier")
        A(f"  s_cmp_lg_u32 s{sW}, 0")
        A("  s_cbranch_scc1 L_wait")
        A(f"  s_lshl_b32 s{sT}, s{sH}, 5")
        A(f"  v_mov_b32 v{T0}, s{sT}")
        A(f"  v_mov_b32 v{T1}, 1")
        A(f"  v_mov_b32 v{T3}, 16512")
        A("  s_mov_b64 exec, 1")
        A(f"  global_atomic_add v{T2}, v{T0}, v{T1}, s[20:21] sc0 sc1")
        A("  s_waitcnt vmcnt(0)")
        A(f"  ds_write_b32 v{T3}, v{T2}")
        A("  s_mov_b64 exec, -1")
        A("  s_waitcnt lgkmcnt(0)")
        A("L_wait:")
        A("  s_barrier")
        A(f"  v_mov_b32 v{T3}, 16512")
        A(f"  ds_read_b32 v{T2}, v{T3}")
        A("  s_waitcnt lgkmcnt(0)")
        A(f"  v_readfirstlane_b32 s{sT}, v{T2}")
        A("  s_nop 3")
        A(f"  s_cmp_lg_u32 s{sT}, 31")
        A("  s_cbranch_scc1 L_done")
        A(f"  v_lshrrev_b32 v{T0}, 5, v{LANE}")
        A(f"  v_and_b32 v{T1}, 15, v{LANE}")
        A(f"  v_lshl_add_u32 v{T1}, v{T0}, 4, v{T1}")
        A(f"  v_lshl_add_u32 v{T1}, v{T1}, 12, v{T5}")
        A(f"  s_lshl_b32 s{sREC}, s{sH}, 17")
        A(f"  buffer_load_dwordx2 v[{D}:{D+1}], v{T1}, {WSRD}, s{sREC} offen offset:2048 sc1")
        A(f"  v_and_b32 v{T2}, 31, v{LANE}")
        A(f"  v_lshlrev_b32 v{T2}, 4, v{T2}")
        A(f"  v_lshl_add_u32 v{T2}, v{T0}, 16, v{T2}")
        A(f"  v_lshl_add_u32 v{T2}, v{T5}, 6, v{T2}")
        for k in range(16):
            b = KB + 4 * k
            A(f"  buffer_load_dwordx4 v[{b}:{b+3}], v{T2}, {WSRD}, s{sREC} offen sc1")
            if k < 15:
                A(f"  s_add_u32 s{sREC}, s{sREC}, 4096")
        A("  s_waitcnt vmcnt(16)")
        A(f"  v_mov_b32 v{T0}, v{D}")
        for sh in (8, 4, 2, 1):
            A("  s_nop 1")
            A(f"  v_max_f32_dpp v{T0}, v{T0}, v{T0} row_ror:{sh} row_mask:0xf bank_mask:0xf")
        A(f"  v_mov_b32 v{T1}, v{T0}")
        A("  s_nop 1")
        A(f"  v_permlane32_swap_b32 v{T1}, v{T0}")
        A(f"  v_max_f32 v{T0}, v{T0}, v{T1}")
        A(f"  v_sub_f32 v{D}, v{D}, v{T0}")
        A(f"  v_exp_f32 v{D}, v{D}")
        A("  s_nop 0")
        A(f"  v_mul_f32 v{T0}, v{D}, v{D+1}")
        for sh in (8, 4, 2, 1):
            A("  s_nop 1")
            A(f"  v_add_f32_dpp v{T0}, v{T0}, v{T0} row_ror:{sh} row_mask:0xf bank_mask:0xf")
        A(f"  v_mov_b32 v{T1}, v{T0}")
        A("  s_nop 1")
        A(f"  v_permlane32_swap_b32 v{T1}, v{T0}")
        A(f"  v_add_f32 v{T0}, v{T0}, v{T1}")
        A(f"  v_rcp_f32 v{T0}, v{T0}")
        for e in range(4):
            A(f"  v_mov_b32 v{PA+e}, 0")
        for k in range(16):
            b = KB + 4 * k
            A(f"  s_waitcnt vmcnt({15-k})")
            for e in range(4):
                A(f"  v_fmac_f32_dpp v{PA+e}, v{D}, v{b+e} row_newbcast:{k} row_mask:0xf bank_mask:0xf")
        for e in range(4):
            A(f"  v_mov_b32 v{VS+e}, v{PA+e}")
        A("  s_nop 1")
        for e in range(4):
            A(f"  v_permlane32_swap_b32 v{VS+e}, v{PA+e}")
        for e in range(4):
            A(f"  v_add_f32 v{PA+e}, v{PA+e}, v{VS+e}")
        for e in range(4):
            A(f"  v_mul_f32 v{PA+e}, v{PA+e}, v{T0}")
        A(f"  v_cvt_pk_bf16_f32 v{PA}, v{PA}, v{PA+1}")
        A(f"  v_cvt_pk_bf16_f32 v{PA+1}, v{PA+2}, v{PA+3}")
        A(f"  s_lshl_b32 s{sT}, s{sH}, 2")
        A(f"  s_add_u32 s{sT}, s{sT}, s{sW}")
        A(f"  s_lshl_b32 s{sT}, s{sT}, 8")
        A(f"  v_lshl_add_u32 v{T1}, v{LANE}, 3, s{sT}")
        A("  s_mov_b32 exec_hi, 0")
        A(f"  global_store_dwordx2 v{T1}, v[{PA}:{PA+1}], s[18:19]")
        A("  s_mov_b64 exec, -1")
    A("L_done:")
    if stamp:
        A("  s_waitcnt vmcnt(0)")
        A("  s_memrealtime s[64:65]")
        A("  s_getreg_b32 s66, hwreg(HW_REG_XCC_ID)")
        A("  s_waitcnt lgkmcnt(0)")
        A("  v_mov_b32 v16, s60"); A("  v_mov_b32 v17, s64"); A("  v_mov_b32 v18, s66"); A("  v_mov_b32 v19, s62")
        A(f"  s_lshl_b32 s{sT}, s2, 2")
        A(f"  s_add_u32 s{sT}, s{sT}, s{sW}")
        A(f"  s_lshl_b32 s{sT}, s{sT}, 4")
        A(f"  s_add_u32 s{sT}, s{sT}, {536870912 - 262144}")
        A(f"  v_mov_b32 v1, s{sT}")
        A("  s_mov_b64 exec, 1")
        A("  global_store_dwordx4 v1, v[16:19], s[22:23]")
    A("L_end:")
    A("  s_endpgm")
    A('.section .rodata,"a"'); A(".p2align 6")
    A(f".amdhsa_kernel {NAME}_kernel")
    A(f"  .amdhsa_next_free_vgpr 256"); A("  .amdhsa_next_free_sgpr 72"); A(f"  .amdhsa_accum_offset 256")
    A("  .amdhsa_group_segment_fixed_size 0"); A("  .amdhsa_kernarg_size 80"); A("  .amdhsa_user_sgpr_count 2")
    A("  .amdhsa_user_sgpr_kernarg_segment_ptr 1"); A("  .amdhsa_system_sgpr_workgroup_id_x 1")
    A(".end_amdhsa_kernel")
    return "\n".join(L) + "\n"

if __name__ == "__main__":
    out = sys.argv[1]
    kw = eval("dict(" + (sys.argv[2] if len(sys.argv) > 2 else "") + ")")
    open(out, "w").write(gen(**kw))
```

```python
import sys, math, struct
NAME = "standalone__kv_cache_quant_int4_int2_kv_with_per_channel_or_per_token_scales__decode"
HEADER = open("cdna_kernels/" + NAME + ".s.ref").read().split("; Override launch geometry")[0]

def f32bits(x):
    return struct.unpack("<I", struct.pack("<f", x))[0]

def gen(x=False, itpos=4, ph=0, flags="nt", stamp=False, combine="last", oldmap=False, nosm=False, smallnt=False):
    NWG, W, NIT = 256, 4, 8
    L = []
    A = L.append
    LDS = 16640
    A(HEADER.rstrip("\n"))
    A(f"; @launch grid=({NWG},1,1) block=(256,1,1) lds={LDS}")
    A('.amdgcn_target "amdgcn-amd-amdhsa--gfx950"')
    A(".text")
    A(f".globl {NAME}_kernel")
    A(".p2align 8")
    A(f".type {NAME}_kernel,@function")
    A(f"{NAME}_kernel:")
    LANE, KOFF, VOFF, SOFF, MLANE, M, LS, CORR = 1, 2, 3, 4, 5, 6, 7, 8
    T0, T1, T2, T3, T4, T5, T6 = 9, 10, 11, 12, 13, 14, 15
    QS = 16
    ACC = 32
    Z = 64
    D = 68
    PA = 76
    VS = 80
    VZ = 84
    VSF = 88
    VP = 96
    KB = 128
    VB = 192
    sW, sH, sI, sJ, sKV, sS, sIT, sT = 24, 25, 26, 27, 28, 29, 30, 31
    sC, sPERM, sMASK, sBASE, sPH, sREC, sT2 = 52, 53, 54, 55, 56, 57, 58
    KSRD, VSRD, SSRD, ZSRD, WSRD = "s[32:35]", "s[36:39]", "s[40:43]", "s[44:47]", "s[48:51]"
    C = math.log2(math.e) / math.sqrt(128.0)

    A(f"  s_cmp_ge_u32 s2, {NWG}")
    A("  s_cbranch_scc1 L_end")
    A("  s_load_dwordx16 s[4:19], s[0:1], 0")
    A("  s_load_dwordx4 s[20:23], s[0:1], 64")
    if stamp:
        A("  s_memrealtime s[60:61]")
    A(f"  v_lshrrev_b32 v{T0}, 6, v0")
    A(f"  v_and_b32 v{LANE}, 63, v0")
    A(f"  v_readfirstlane_b32 s{sW}, v{T0}")
    A(f"  v_and_b32 v{T1}, 15, v{LANE}")
    A(f"  v_lshrrev_b32 v{T2}, 4, v{LANE}")
    if x:
        A(f"  s_and_b32 s{sH}, s2, 7")
        A(f"  s_lshr_b32 s{sI}, s2, 3")
    else:
        A(f"  s_lshr_b32 s{sH}, s2, 5")
        A(f"  s_and_b32 s{sI}, s2, 31")
    A(f"  v_lshrrev_b32 v{T3}, 2, v{T1}")
    A(f"  v_and_b32 v{T4}, 3, v{T1}")
    A(f"  v_lshl_add_u32 v{T3}, v{T3}, 3, v{T4}")
    A(f"  v_lshlrev_b32 v{SOFF}, 4, v{T2}")
    A(f"  v_lshl_add_u32 v{KOFF}, v{T3}, 9, v{SOFF}")
    A(f"  v_lshlrev_b32 v{T3}, 4, v{T1}")
    A(f"  v_lshl_add_u32 v{VOFF}, v{T2}, 12, v{T3}")
    if oldmap:
        A(f"  v_lshl_add_u32 v{KOFF}, v{T1}, 9, v{SOFF}")
        A(f"  v_lshl_add_u32 v{VOFF}, v{T2}, 9, v{T3}")
    A(f"  s_lshl_b32 s{sJ}, s{sW}, 5")
    A(f"  s_add_u32 s{sJ}, s{sJ}, s{sI}")
    A(f"  s_and_b32 s{sT}, s{sJ}, {(1 << itpos) - 1}")
    A(f"  s_lshr_b32 s{sT2}, s{sJ}, {itpos}")
    A(f"  s_lshl_b32 s{sT2}, s{sT2}, {itpos + 3}")
    A(f"  s_or_b32 s{sT}, s{sT}, s{sT2}")
    A(f"  s_lshl_b32 s{sBASE}, s{sT}, 14")
    A(f"  s_lshl_b32 s{sT}, s{sH}, 24")
    A(f"  s_add_u32 s{sBASE}, s{sBASE}, s{sT}")
    A(f"  s_mul_i32 s{sPH}, s{sH}, {ph}")
    A(f"  s_mov_b32 s{sIT}, 0")
    assert itpos <= 6
    A(f"  s_lshl_b32 s{sT}, s{sH}, 10")
    A(f"  v_lshl_add_u32 v{T5}, v{LANE}, 2, s{sT}")
    A(f"  s_lshl_b32 s{sT}, s{sH}, 9")
    A(f"  s_lshr_b32 s{sT2}, s{sW}, 1")
    A(f"  s_lshl_b32 s{sT2}, s{sT2}, 8")
    A(f"  s_add_u32 s{sT}, s{sT}, s{sT2}")
    A(f"  v_lshl_add_u32 v{T6}, v{LANE}, 2, s{sT}")
    def setoffs():
        A(f"  s_add_u32 s{sT}, s{sIT}, s{sPH}")
        A(f"  s_and_b32 s{sT}, s{sT}, 7")
        A(f"  s_lshl_b32 s{sT}, s{sT}, {14 + itpos}")
        A(f"  s_add_u32 s{sKV}, s{sT}, s{sBASE}")
        A(f"  s_lshr_b32 s{sS}, s{sKV}, 8")
        if oldmap:
            for k in range(4):
                A(f"  s_add_u32 s{68+k}, s{sKV}, {4096*k}")
    setoffs()
    A("  s_mov_b32 s34, 0x8000000"); A("  s_mov_b32 s35, 0x20000")
    A("  s_mov_b32 s38, 0x8000000"); A("  s_mov_b32 s39, 0x20000")
    A("  s_mov_b32 s42, 0x80000"); A("  s_mov_b32 s43, 0x20000")
    A("  s_mov_b32 s46, 0x80000"); A("  s_mov_b32 s47, 0x20000")
    A("  s_mov_b32 s50, 0x100000"); A("  s_mov_b32 s51, 0x20000")
    A("  s_waitcnt lgkmcnt(0)")
    A("  s_mov_b32 s32, s6"); A("  s_mov_b32 s33, s7")
    A("  s_mov_b32 s36, s8"); A("  s_mov_b32 s37, s9")
    Q0 = VP
    KS, KZ = VP + 4, VP + 5
    for h in range(4):
        A(f"  global_load_dword v{Q0+h}, v{T5}, s[4:5] offset:{256*h}")
    A(f"  global_load_dword v{KS}, v{T6}, s[10:11]")
    A(f"  global_load_dword v{KZ}, v{T6}, s[12:13]")
    A("  s_mov_b32 s40, s14"); A("  s_mov_b32 s41, s15")
    A("  s_mov_b32 s44, s16"); A("  s_mov_b32 s45, s17")
    A("  s_mov_b32 s48, s22"); A("  s_mov_b32 s49, s23")
    def burst():
        for T in range(2):
            for i in range(8):
                b = KB + 4 * (8 * T + i)
                if oldmap:
                    A(f"  buffer_load_dwordx4 v[{b}:{b+3}], v{KOFF}, {KSRD}, s{68+2*T} offen offset:{64*i} {flags}")
                else:
                    A(f"  buffer_load_dwordx4 v[{b}:{b+3}], v{KOFF}, {KSRD}, s{sKV} offen offset:{2048*T + 64*i} {flags}")
        sf = " nt" if smallnt else ""
        A(f"  buffer_load_dwordx4 v[{VS}:{VS+3}], v{SOFF}, {SSRD}, s{sS} offen{sf}")
        A(f"  buffer_load_dwordx4 v[{VZ}:{VZ+3}], v{SOFF}, {ZSRD}, s{sS} offen{sf}")
        for dh in range(2):
            for j in range(8):
                b = VB + 4 * (8 * dh + j)
                if oldmap:
                    A(f"  buffer_load_dwordx4 v[{b}:{b+3}], v{VOFF}, {VSRD}, s{68 + j//2} offen offset:{2048*(j%2) + 256*dh} {flags}")
                else:
                    A(f"  buffer_load_dwordx4 v[{b}:{b+3}], v{VOFF}, {VSRD}, s{sKV} offen offset:{512*j + 256*dh} {flags}")
    burst()
    A(f"  s_mov_b32 s{sC}, {f32bits(C):#x}")
    A(f"  s_mov_b32 s{sPERM}, 0x07060302")
    A(f"  s_mov_b32 s{sMASK}, 0xffff0000")
    A(f"  s_lshl_b32 s{sT2}, s{sW}, 12")
    A(f"  s_lshl_b32 s{sREC}, s{sH}, 5")
    A(f"  s_add_u32 s{sREC}, s{sREC}, s{sI}")
    A(f"  s_lshl_b32 s{sREC}, s{sREC}, 12")
    A(f"  v_bfe_i32 v{MLANE}, v{LANE}, 2, 1")
    A(f"  v_and_b32 v{MLANE}, s{sMASK}, v{MLANE}")
    A(f"  v_mov_b32 v{M}, 0xff800000")
    A(f"  v_mov_b32 v{LS}, 0")
    for r in range(36):
        A(f"  v_mov_b32 v{ACC+r}, 0")
    A(f"  v_lshl_add_u32 v{T3}, v{T2}, 6, s{sT2}")
    A(f"  v_bfe_u32 v{T4}, v{LANE}, 1, 2")
    A(f"  v_lshl_add_u32 v{T3}, v{T4}, 4, v{T3}")
    A(f"  v_bfe_u32 v{T4}, v{LANE}, 3, 1")
    A(f"  v_lshl_add_u32 v{T3}, v{T4}, 3, v{T3}")
    A(f"  v_and_b32 v{T4}, 1, v{LANE}")
    A(f"  v_lshl_add_u32 v{T3}, v{T4}, 2, v{T3}")
    A(f"  v_add_u32 v{T4}, s{sT2}, v{SOFF}")
    A(f"  v_and_b32 v{T0}, 7, v{LANE}")
    A(f"  v_lshl_add_u32 v{T0}, v{T0}, 8, v{T4}")
    A("  s_waitcnt vmcnt(34)")
    KS0, KS1 = VP + 6, VP + 7
    A(f"  v_lshlrev_b32 v{KS0}, 16, v{KS}")
    A(f"  v_and_b32 v{KS1}, s{sMASK}, v{KS}")
    A(f"  ds_write_b32 v{T3}, v{KZ} offset:2048")
    for h in range(4):
        a0, a1, hi, h0, h1 = VP + 8 + 5 * h, VP + 9 + 5 * h, VP + 10 + 5 * h, VP + 11 + 5 * h, VP + 12 + 5 * h
        A(f"  v_lshlrev_b32 v{a0}, 16, v{Q0+h}")
        A(f"  v_and_b32 v{a1}, s{sMASK}, v{Q0+h}")
        A(f"  v_mul_f32 v{a0}, v{a0}, v{KS0}")
        A(f"  v_mul_f32 v{a1}, v{a1}, v{KS1}")
        A(f"  v_cvt_pk_bf16_f32 v{hi}, v{a0}, v{a1}")
        A(f"  v_lshlrev_b32 v{h0}, 16, v{hi}")
        A(f"  v_and_b32 v{h1}, s{sMASK}, v{hi}")
        A(f"  ds_write_b32 v{T3}, v{hi} offset:{256*h}")
        A(f"  v_sub_f32 v{a0}, v{a0}, v{h0}")
        A(f"  v_sub_f32 v{a1}, v{a1}, v{h1}")
        A(f"  v_cvt_pk_bf16_f32 v{a0}, v{a0}, v{a1}")
        A(f"  ds_write_b32 v{T3}, v{a0} offset:{1024 + 256*h}")
    A("  s_waitcnt lgkmcnt(0)")
    for s in range(4):
        A(f"  ds_read_b128 v[{QS+4*s}:{QS+4*s+3}], v{T0} offset:{64*s}")
    for s in range(4):
        A(f"  ds_read_b128 v[{VP+4*s}:{VP+4*s+3}], v{T4} offset:{2048 + 64*s}")
    A("  s_waitcnt lgkmcnt(0)")
    for s in range(4):
        A(f"  v_mfma_f32_16x16x32_bf16 v[{D}:{D+3}], v[{VP+4*s}:{VP+4*s+3}], v[{QS+4*s}:{QS+4*s+3}], {'0' if s == 0 else f'v[{D}:{D+3}]'}")
    A("  s_nop 7")
    A(f"  v_add_f32_dpp v{CORR}, v{D}, v{D} row_ror:4 row_mask:0xf bank_mask:0xf")
    A("  s_branch L_body")
    A("L_loop:")
    setoffs()
    burst()
    A("L_body:")
    NLD = 34
    pend = None
    for T in range(2):
        for s in range(4):
            a = KB + 4 * (8 * T + 2 * s)
            b = a + 4
            A(f"  s_waitcnt vmcnt({NLD - (8*T + 2*s + 1)})")
            for e in range(4):
                A(f"  v_cvt_f32_i32 v{a+e}, v{a+e}")
                if e == 1 and pend:
                    A(pend); pend = None
            A(f"  v_cvt_pk_bf16_f32 v{a}, v{a}, v{a+1}")
            A(f"  v_cvt_pk_bf16_f32 v{a+1}, v{a+2}, v{a+3}")
            A(f"  s_waitcnt vmcnt({NLD - (8*T + 2*s + 2)})")
            for e in range(4):
                A(f"  v_cvt_f32_i32 v{b+e}, v{b+e}")
            A(f"  v_cvt_pk_bf16_f32 v{a+2}, v{b}, v{b+1}")
            A(f"  v_cvt_pk_bf16_f32 v{a+3}, v{b+2}, v{b+3}")
            d = D + 4 * T
            pend = f"  v_mfma_f32_16x16x32_bf16 v[{d}:{d+3}], v[{a}:{a+3}], v[{QS+4*s}:{QS+4*s+3}], {'0' if s == 0 else f'v[{d}:{d+3}]'}"
    A(f"  s_waitcnt vmcnt({NLD - 18})")
    A(f"  v_lshlrev_b32 v{VSF}, 16, v{VS}")
    A(pend); pend = None
    A(f"  v_and_b32 v{VSF+1}, s{sMASK}, v{VS}")
    for r in range(1, 4):
        A(f"  v_lshlrev_b32 v{VSF+2*r}, 16, v{VS+r}")
        A(f"  v_and_b32 v{VSF+2*r+1}, s{sMASK}, v{VS+r}")
    if not nosm:
        for j in range(8):
            A(f"  v_add_f32_dpp v{D+j}, v{D+j}, v{D+j} row_ror:4 row_mask:0xf bank_mask:0xf")
        A(f"  v_max3_f32 v{T0}, v{D}, v{D+1}, v{D+2}")
        A(f"  v_max3_f32 v{T1}, v{D+3}, v{D+4}, v{D+5}")
        A(f"  v_max3_f32 v{T0}, v{T0}, v{D+6}, v{D+7}")
        A(f"  v_max_f32 v{T0}, v{T0}, v{T1}")
        A(f"  v_mov_b32 v{T1}, v{T0}")
        A("  s_nop 1")
        A(f"  v_permlane32_swap_b32 v{T1}, v{T0}")
        A(f"  v_max_f32 v{T0}, v{T0}, v{T1}")
        A(f"  v_mov_b32 v{T1}, v{T0}")
        A("  s_nop 1")
        A(f"  v_permlane16_swap_b32 v{T1}, v{T0}")
        A(f"  v_max_f32 v{T0}, v{T0}, v{T1}")
        A(f"  v_mul_f32 v{T0}, s{sC}, v{T0}")
        A(f"  v_max_f32 v{T0}, v{T0}, v{M}")
        A(f"  v_sub_f32 v{T1}, v{M}, v{T0}")
        A(f"  v_mov_b32 v{M}, v{T0}")
        A(f"  v_exp_f32 v{T1}, v{T1}")
        for j in range(8):
            A(f"  v_fma_f32 v{D+j}, v{D+j}, s{sC}, -v{M}")
        for j in range(8):
            A(f"  v_exp_f32 v{D+j}, v{D+j}")
        A(f"  v_mul_f32 v{LS}, v{LS}, v{T1}")
        A(f"  v_add_f32 v{T2}, v{D}, v{D+1}")
        A(f"  v_add_f32 v{T3}, v{D+2}, v{D+3}")
        A(f"  v_add_f32 v{T4}, v{D+4}, v{D+5}")
        A(f"  v_add_f32 v{T5}, v{D+6}, v{D+7}")
        for j in range(8):
            A(f"  v_mul_f32 v{D+j}, v{D+j}, v{VSF+j}")
        A(f"  v_add_f32 v{T2}, v{T2}, v{T3}")
        A(f"  v_add_f32 v{T4}, v{T4}, v{T5}")
        for j in range(8):
            A(f"  v_and_b32 v{VSF+j}, v{MLANE}, v{D+j}")
        A(f"  v_add_f32 v{LS}, v{LS}, v{T2}")
        for j in range(8):
            A(f"  v_sub_f32 v{D+j}, v{D+j}, v{VSF+j}")
        A(f"  v_add_f32 v{LS}, v{LS}, v{T4}")
        for r in range(4):
            A(f"  v_perm_b32 v{PA+r}, v{D+2*r+1}, v{D+2*r}, s{sPERM}")
        for r in range(36):
            i = r % 4
            A(f"  v_mul_f32_dpp v{ACC+r}, v{T1}, v{ACC+r} quad_perm:[{i},{i},{i},{i}] row_mask:0xf bank_mask:0xf")
    A("  s_nop 1")
    A(f"  v_mfma_f32_16x16x32_bf16 v[{Z}:{Z+3}], v[{PA}:{PA+3}], v[{VZ}:{VZ+3}], v[{Z}:{Z+3}]")
    pend = []
    for dh in range(2):
        for r in range(4):
            a = VB + 4 * (8 * dh + 2 * r)
            b = a + 4
            A(f"  s_waitcnt vmcnt({NLD - (18 + 8*dh + 2*r + 1)})")
            for e in range(4):
                A(f"  v_cvt_f32_i32 v{a+e}, v{a+e}")
                if e >= 1 and pend:
                    A(pend.pop(0))
            A(f"  s_waitcnt vmcnt({NLD - (18 + 8*dh + 2*r + 2)})")
            for e in range(4):
                A(f"  v_cvt_f32_i32 v{b+e}, v{b+e}")
                if pend:
                    A(pend.pop(0))
            for c in range(4):
                A(f"  v_cvt_pk_bf16_f32 v{VP+16*dh+4*c+r}, v{a+c}, v{b+c}")
        for c in range(4):
            ac = ACC + 16 * dh + 4 * c
            vp = VP + 16 * dh + 4 * c
            pend.append(f"  v_mfma_f32_16x16x32_bf16 v[{ac}:{ac+3}], v[{PA}:{PA+3}], v[{vp}:{vp+3}], v[{ac}:{ac+3}]")
    A(f"  s_add_u32 s{sIT}, s{sIT}, 1")
    A(f"  s_cmp_lg_u32 s{sIT}, {NIT}")
    for p in pend:
        A(p)
    A("  s_cbranch_scc1 L_loop")
    if stamp:
        A("  s_memrealtime s[62:63]")
    A(f"  v_mov_b32 v{T1}, v{LS}")
    A(f"  v_fma_f32 v{M}, v{CORR}, -s{sC}, v{M}")
    A(f"  s_lshl_b32 s{sT2}, s{sW}, 12")
    A(f"  v_permlane32_swap_b32 v{T1}, v{LS}")
    A(f"  v_add_f32 v{LS}, v{LS}, v{T1}")
    A(f"  v_mov_b32 v{T1}, v{LS}")
    A(f"  v_and_b32 v{T2}, 15, v{LANE}")
    A(f"  v_lshlrev_b32 v{T2}, 4, v{T2}")
    A(f"  v_permlane16_swap_b32 v{T1}, v{LS}")
    A(f"  v_add_f32 v{LS}, v{LS}, v{T1}")
    A(f"  v_lshl_add_u32 v{T2}, v{SOFF}, 7, v{T2}")
    A(f"  v_add_u32 v{T2}, s{sT2}, v{T2}")
    A(f"  s_lshl_b32 s{sT}, s{sW}, 2")
    A(f"  s_add_u32 s{sT}, s{sT}, 16384")
    A(f"  v_lshl_add_u32 v{T3}, v{LANE}, 4, s{sT}")
    TR = KB
    for dh in range(2):
        for i in range(4):
            for c in range(4):
                A(f"  v_sub_f32 v{TR+16*dh+4*i+c}, v{ACC+16*dh+4*c+i}, v{Z+i}")
    A("  s_mov_b32 exec_hi, 0")
    for dh in range(2):
        for i in range(4):
            t = TR + 16 * dh + 4 * i
            A(f"  ds_write_b128 v{T2}, v[{t}:{t+3}] offset:{512*i + 256*dh}")
    A("  s_mov_b64 exec, 15")
    A(f"  ds_write_b32 v{T3}, v{M}")
    A(f"  ds_write_b32 v{T3}, v{LS} offset:64")
    A("  s_mov_b64 exec, -1")
    A(f"  s_lshl_b32 s{sT}, s{sW}, 9")
    A(f"  v_lshl_add_u32 v{T4}, v{LANE}, 3, s{sT}")
    A(f"  s_lshl_b32 s{sT}, s{sW}, 4")
    A(f"  v_mov_b32 v{T5}, s{sT}")
    A("  s_waitcnt lgkmcnt(0)")
    A("  s_barrier")
    MW, LW, DAT = VP, VP + 4, VP + 8
    A(f"  ds_read_b128 v[{MW}:{MW+3}], v{T5} offset:16384")
    A(f"  ds_read_b128 v[{LW}:{LW+3}], v{T5} offset:16448")
    for w in range(4):
        for xx in range(2):
            t = DAT + 4 * w + 2 * xx
            A(f"  ds_read_b64 v[{t}:{t+1}], v{T4} offset:{4096*w + 2048*xx}")
    A("  s_waitcnt lgkmcnt(8)")
    A(f"  v_max3_f32 v{T0}, v{MW}, v{MW+1}, v{MW+2}")
    A(f"  v_max_f32 v{T0}, v{T0}, v{MW+3}")
    for w in range(4):
        A(f"  v_sub_f32 v{MW+w}, v{MW+w}, v{T0}")
    for w in range(4):
        A(f"  v_exp_f32 v{MW+w}, v{MW+w}")
    A("  s_nop 0")
    A(f"  v_mul_f32 v{T1}, v{MW}, v{LW}")
    for w in range(1, 4):
        A(f"  v_fmac_f32 v{T1}, v{MW+w}, v{LW+w}")
    A("  s_waitcnt lgkmcnt(0)")
    for w in range(4):
        t = DAT + 4 * w
        A(f"  v_add_f32 v{t}, v{t}, v{t+2}")
        A(f"  v_add_f32 v{t+1}, v{t+1}, v{t+3}")
    O0 = D
    A(f"  v_mul_f32 v{O0}, v{MW}, v{DAT}")
    A(f"  v_mul_f32 v{O0+1}, v{MW}, v{DAT+1}")
    for w in range(1, 4):
        A(f"  v_fmac_f32 v{O0}, v{MW+w}, v{DAT+4*w}")
        A(f"  v_fmac_f32 v{O0+1}, v{MW+w}, v{DAT+4*w+1}")
    A(f"  v_mov_b32 v{O0+2}, v{T0}")
    A(f"  v_mov_b32 v{O0+3}, v{T1}")
    A(f"  v_lshrrev_b32 v{T5}, 1, v{T5}")
    A(f"  buffer_store_dwordx2 v[{O0}:{O0+1}], v{T4}, {WSRD}, s{sREC} offen sc1")
    A("  s_mov_b64 exec, 1")
    A(f"  buffer_store_dwordx2 v[{O0+2}:{O0+3}], v{T5}, {WSRD}, s{sREC} offen offset:2048 sc1")
    A("  s_mov_b64 exec, -1")
    if combine == "last":
        A("  s_waitcnt vmcnt(0)")
        A("  s_barrier")
        A(f"  s_cmp_lg_u32 s{sW}, 0")
        A("  s_cbranch_scc1 L_wait")
        A(f"  s_lshl_b32 s{sT}, s{sH}, 5")
        A(f"  v_mov_b32 v{T0}, s{sT}")
        A(f"  v_mov_b32 v{T1}, 1")
        A(f"  v_mov_b32 v{T3}, 16512")
        A("  s_mov_b64 exec, 1")
        A(f"  global_atomic_add v{T2}, v{T0}, v{T1}, s[20:21] sc0 sc1")
        A("  s_waitcnt vmcnt(0)")
        A(f"  ds_write_b32 v{T3}, v{T2}")
        A("  s_mov_b64 exec, -1")
        A("  s_waitcnt lgkmcnt(0)")
        A("L_wait:")
        A("  s_barrier")
        A(f"  v_mov_b32 v{T3}, 16512")
        A(f"  ds_read_b32 v{T2}, v{T3}")
        A("  s_waitcnt lgkmcnt(0)")
        A(f"  v_readfirstlane_b32 s{sT}, v{T2}")
        A("  s_nop 3")
        A(f"  s_cmp_lg_u32 s{sT}, 31")
        A("  s_cbranch_scc1 L_done")
        A(f"  v_lshrrev_b32 v{T0}, 5, v{LANE}")
        A(f"  v_and_b32 v{T1}, 15, v{LANE}")
        A(f"  v_lshl_add_u32 v{T1}, v{T0}, 4, v{T1}")
        A(f"  v_lshl_add_u32 v{T1}, v{T1}, 12, v{T5}")
        A(f"  s_lshl_b32 s{sREC}, s{sH}, 17")
        A(f"  buffer_load_dwordx2 v[{D}:{D+1}], v{T1}, {WSRD}, s{sREC} offen offset:2048 sc1")
        A(f"  v_and_b32 v{T2}, 31, v{LANE}")
        A(f"  v_lshlrev_b32 v{T2}, 4, v{T2}")
        A(f"  v_lshl_add_u32 v{T2}, v{T0}, 16, v{T2}")
        A(f"  v_lshl_add_u32 v{T2}, v{T5}, 6, v{T2}")
        for k in range(16):
            b = KB + 4 * k
            A(f"  buffer_load_dwordx4 v[{b}:{b+3}], v{T2}, {WSRD}, s{sREC} offen sc1")
            if k < 15:
                A(f"  s_add_u32 s{sREC}, s{sREC}, 4096")
        A("  s_waitcnt vmcnt(16)")
        A(f"  v_mov_b32 v{T0}, v{D}")
        for sh in (8, 4, 2, 1):
            A("  s_nop 1")
            A(f"  v_max_f32_dpp v{T0}, v{T0}, v{T0} row_ror:{sh} row_mask:0xf bank_mask:0xf")
        A(f"  v_mov_b32 v{T1}, v{T0}")
        A("  s_nop 1")
        A(f"  v_permlane32_swap_b32 v{T1}, v{T0}")
        A(f"  v_max_f32 v{T0}, v{T0}, v{T1}")
        A(f"  v_sub_f32 v{D}, v{D}, v{T0}")
        A(f"  v_exp_f32 v{D}, v{D}")
        A("  s_nop 0")
        A(f"  v_mul_f32 v{T0}, v{D}, v{D+1}")
        for sh in (8, 4, 2, 1):
            A("  s_nop 1")
            A(f"  v_add_f32_dpp v{T0}, v{T0}, v{T0} row_ror:{sh} row_mask:0xf bank_mask:0xf")
        A(f"  v_mov_b32 v{T1}, v{T0}")
        A("  s_nop 1")
        A(f"  v_permlane32_swap_b32 v{T1}, v{T0}")
        A(f"  v_add_f32 v{T0}, v{T0}, v{T1}")
        A(f"  v_rcp_f32 v{T0}, v{T0}")
        for e in range(4):
            A(f"  v_mov_b32 v{PA+e}, 0")
        for k in range(16):
            b = KB + 4 * k
            A(f"  s_waitcnt vmcnt({15-k})")
            for e in range(4):
                A(f"  v_fmac_f32_dpp v{PA+e}, v{D}, v{b+e} row_newbcast:{k} row_mask:0xf bank_mask:0xf")
        for e in range(4):
            A(f"  v_mov_b32 v{VS+e}, v{PA+e}")
        A("  s_nop 1")
        for e in range(4):
            A(f"  v_permlane32_swap_b32 v{VS+e}, v{PA+e}")
        for e in range(4):
            A(f"  v_add_f32 v{PA+e}, v{PA+e}, v{VS+e}")
        for e in range(4):
            A(f"  v_mul_f32 v{PA+e}, v{PA+e}, v{T0}")
        A(f"  v_cvt_pk_bf16_f32 v{PA}, v{PA}, v{PA+1}")
        A(f"  v_cvt_pk_bf16_f32 v{PA+1}, v{PA+2}, v{PA+3}")
        A(f"  s_lshl_b32 s{sT}, s{sH}, 2")
        A(f"  s_add_u32 s{sT}, s{sT}, s{sW}")
        A(f"  s_lshl_b32 s{sT}, s{sT}, 8")
        A(f"  v_lshl_add_u32 v{T1}, v{LANE}, 3, s{sT}")
        A("  s_mov_b32 exec_hi, 0")
        A(f"  global_store_dwordx2 v{T1}, v[{PA}:{PA+1}], s[18:19]")
        A("  s_mov_b64 exec, -1")
    A("L_done:")
    if stamp:
        A("  s_waitcnt vmcnt(0)")
        A("  s_memrealtime s[64:65]")
        A("  s_getreg_b32 s66, hwreg(HW_REG_XCC_ID)")
        A("  s_waitcnt lgkmcnt(0)")
        A("  v_mov_b32 v16, s60"); A("  v_mov_b32 v17, s64"); A("  v_mov_b32 v18, s66"); A("  v_mov_b32 v19, s62")
        A(f"  s_lshl_b32 s{sT}, s2, 2")
        A(f"  s_add_u32 s{sT}, s{sT}, s{sW}")
        A(f"  s_lshl_b32 s{sT}, s{sT}, 4")
        A(f"  s_add_u32 s{sT}, s{sT}, {536870912 - 262144}")
        A(f"  v_mov_b32 v1, s{sT}")
        A("  s_mov_b64 exec, 1")
        A("  global_store_dwordx4 v1, v[16:19], s[22:23]")
    A("L_end:")
    A("  s_endpgm")
    A('.section .rodata,"a"'); A(".p2align 6")
    A(f".amdhsa_kernel {NAME}_kernel")
    A(f"  .amdhsa_next_free_vgpr 256"); A("  .amdhsa_next_free_sgpr 72"); A(f"  .amdhsa_accum_offset 256")
    A("  .amdhsa_group_segment_fixed_size 0"); A("  .amdhsa_kernarg_size 80"); A("  .amdhsa_user_sgpr_count 2")
    A("  .amdhsa_user_sgpr_kernarg_segment_ptr 1"); A("  .amdhsa_system_sgpr_workgroup_id_x 1")
    A(".end_amdhsa_kernel")
    return "\n".join(L) + "\n"

if __name__ == "__main__":
    out = sys.argv[1]
    kw = eval("dict(" + (sys.argv[2] if len(sys.argv) > 2 else "") + ")")
    open(out, "w").write(gen(**kw))
```

```python
import sys, math, struct
NAME = "standalone__kv_cache_quant_int4_int2_kv_with_per_channel_or_per_token_scales__decode"
HEADER = open("cdna_kernels/" + NAME + ".s.ref").read().split("; Override launch geometry")[0]

def f32bits(x):
    return struct.unpack("<I", struct.pack("<f", x))[0]

def gen(x=True, itpos=4, ph=1, flags="nt", stamp=False, qflags="", sflags="nt", outsc="",
        warm=0, warm_it=3, warm_w=1, split=True, pf="sc1", n1=8, tlb=None, nlast=0, lastk='', lastv='nt', order='kv', late=16, latemode='last', per=16, nlate=1, first=7, early=True, pubf='sc1', recstride=4096, dly_tail=0, dly_head=0):
    NWG, W, NIT = 256, 4, 8
    L = []
    A = L.append
    LDS = 16640 + 4096
    A(HEADER.rstrip("\n"))
    A(f"; @launch grid=({NWG},1,1) block=(256,1,1) lds={LDS}")
    A('.amdgcn_target "amdgcn-amd-amdhsa--gfx950"')
    A(".text")
    A(f".globl {NAME}_kernel")
    A(".p2align 8")
    A(f".type {NAME}_kernel,@function")
    A(f"{NAME}_kernel:")
    LANE, KOFF, VOFF, G16, MLANE, M, LS, CORR = 1, 2, 3, 4, 5, 6, 7, 8
    T0, T1, T2, T3, T4, T5, T6 = 9, 10, 11, 12, 13, 14, 15
    QS = 16; ACC = 32; Z = 64; S = 68; PA = 76; VS = 80; VZ = 84; VSF = 88; VP = 96
    SADDR, PUB, POL, WA, RA, MLA, MA, MLO, OUTO, FLG, DBGO, ONE, CNT = range(112, 125)
    KB = 128
    VB = 192
    sW, sH, sI, sJ, sKV, sS, sIT, sT = 24, 25, 26, 27, 28, 29, 30, 31
    sC, sPERM, sMASK, sBASE, sPH, sREC, sT2, sHB, sWARM = 52, 53, 54, 55, 56, 57, 58, 59, 44
    KSRD, VSRD, WSRD = "s[32:35]", "s[36:39]", "s[40:43]"
    C = math.log2(math.e) / math.sqrt(128.0)
    DPPF = "row_mask:0xf bank_mask:0xf"

    A(f"  s_cmp_ge_u32 s2, {NWG}")
    A("  s_cbranch_scc1 L_end")
    A("  s_load_dwordx16 s[4:19], s[0:1], 0")
    A("  s_load_dwordx4 s[20:23], s[0:1], 64")
    if stamp:
        A("  s_memrealtime s[60:61]")
    A(f"  v_lshrrev_b32 v{T0}, 6, v0")
    A(f"  v_and_b32 v{LANE}, 63, v0")
    A(f"  v_readfirstlane_b32 s{sW}, v{T0}")
    A(f"  v_and_b32 v{T1}, 15, v{LANE}")
    A(f"  v_lshrrev_b32 v{T2}, 4, v{LANE}")
    if x:
        A(f"  s_and_b32 s{sH}, s2, 7")
        A(f"  s_lshr_b32 s{sI}, s2, 3")
    else:
        A(f"  s_lshr_b32 s{sH}, s2, 5")
        A(f"  s_and_b32 s{sI}, s2, 31")
    A(f"  v_lshlrev_b32 v{G16}, 4, v{T2}")
    A(f"  v_lshrrev_b32 v{T3}, 2, v{T1}")
    A(f"  v_lshl_add_u32 v{KOFF}, v{T3}, 12, v{G16}")
    A(f"  v_and_b32 v{T3}, 3, v{LANE}")
    A(f"  v_lshl_add_u32 v{KOFF}, v{T3}, 9, v{KOFF}")
    A(f"  v_lshlrev_b32 v{T3}, 4, v{T1}")
    A(f"  v_lshl_add_u32 v{VOFF}, v{T2}, 12, v{T3}")
    A(f"  s_lshl_b32 s{sJ}, s{sW}, 5")
    A(f"  s_add_u32 s{sJ}, s{sJ}, s{sI}")
    A(f"  s_and_b32 s{sT}, s{sJ}, {(1 << itpos) - 1}")
    A(f"  s_lshr_b32 s{sT2}, s{sJ}, {itpos}")
    A(f"  s_lshl_b32 s{sT2}, s{sT2}, {itpos + 3}")
    A(f"  s_or_b32 s{sT}, s{sT}, s{sT2}")
    A(f"  s_lshl_b32 s{sBASE}, s{sT}, 14")
    A(f"  s_lshl_b32 s{sT}, s{sH}, 24")
    A(f"  s_add_u32 s{sBASE}, s{sBASE}, s{sT}")
    A(f"  s_mul_i32 s{sPH}, s{sH}, {ph}")
    A(f"  s_mov_b32 s{sIT}, 0")
    assert itpos <= 6
    A(f"  s_lshl_b32 s{sT}, s{sH}, 10")
    A(f"  v_lshl_add_u32 v{T5}, v{LANE}, 4, s{sT}")
    A(f"  s_lshl_b32 s{sT}, s{sH}, 9")
    A(f"  s_lshr_b32 s{sT2}, s{sW}, 1")
    A(f"  s_lshl_b32 s{sT2}, s{sT2}, 8")
    A(f"  s_add_u32 s{sT}, s{sT}, s{sT2}")
    A(f"  v_add_u32 v{T6}, s{sT}, v{T3}")
    A(f"  s_lshr_b32 s{sT}, s{sBASE}, 8")
    A(f"  v_and_b32 v{T4}, 7, v{LANE}")
    A(f"  v_lshl_add_u32 v{T4}, v{T4}, 3, s{sT}")
    A(f"  v_lshrrev_b32 v{T0}, 3, v{LANE}")
    A(f"  v_lshl_add_u32 v{T4}, v{T0}, {6 + itpos}, v{T4}")
    def setoffs():
        A(f"  s_add_u32 s{sT}, s{sIT}, s{sPH}")
        A(f"  s_and_b32 s{sT}, s{sT}, 7")
        A(f"  s_lshl_b32 s{sS}, s{sT}, 6")
        A(f"  s_lshl_b32 s{sT}, s{sT}, {14 + itpos}")
        A(f"  s_add_u32 s{sKV}, s{sT}, s{sBASE}")
    setoffs()
    A("  s_mov_b32 s34, 0x8000000"); A("  s_mov_b32 s35, 0x20000")
    A("  s_mov_b32 s38, 0x8000000"); A("  s_mov_b32 s39, 0x20000")
    A("  s_mov_b32 s42, 0x100000"); A("  s_mov_b32 s43, 0x20000")
    A("  s_waitcnt lgkmcnt(0)")
    for _ in range(dly_head): A("  s_sleep 37")
    A("  s_mov_b32 s32, s6"); A("  s_mov_b32 s33, s7")
    A("  s_mov_b32 s36, s8"); A("  s_mov_b32 s37, s9")
    A("  s_mov_b32 s40, s22"); A("  s_mov_b32 s41, s23")
    Q0, KS, KZ, PVS, PVZ = S, S + 4, PA, VS, VS + 2
    A(f"  global_load_dwordx4 v[{Q0}:{Q0+3}], v{T5}, s[4:5] {qflags}")
    A(f"  global_load_dwordx4 v[{KS}:{KS+3}], v{T6}, s[10:11] {qflags}")
    A(f"  global_load_dwordx4 v[{KZ}:{KZ+3}], v{T6}, s[12:13] {qflags}")
    A(f"  global_load_dwordx2 v[{PVS}:{PVS+1}], v{T4}, s[14:15] {sflags}")
    A(f"  global_load_dwordx2 v[{PVZ}:{PVZ+1}], v{T4}, s[16:17] {sflags}")
    def kload(n):
        T, i = n // 8, n % 8
        b = KB + 4 * n
        return f"  buffer_load_dwordx4 v[{b}:{b+3}], v{KOFF}, {KSRD}, s{sKV} offen offset:{2048*T + 64*i} {flags}"
    def vload(n):
        dh, j = n // 8, n % 8
        b = VB + 4 * n
        return f"  buffer_load_dwordx4 v[{b}:{b+3}], v{VOFF}, {VSRD}, s{sKV} offen offset:{512*j + 256*dh} {flags}"
    if order == 'kv':
        SEQ = [("k", n) for n in range(16)] + [("v", n) for n in range(16)]
    else:
        SEQ = [("k", n) for n in range(8)] + [("v", n) for n in range(8)] + [("k", n) for n in range(8, 16)] + [("v", n) for n in range(8, 16)]
    POS = {x: i for i, x in enumerate(SEQ)}
    def burst(nl=0):
        for t, n in SEQ[:32 - nl]:
            A(kload(n) if t == "k" else vload(n))
    burst(late if latemode == 'all' else 0)
    if stamp:
        A("  s_memrealtime s[72:73]")
    A(f"  s_mov_b32 s{sC}, {f32bits(C):#x}")
    A(f"  s_mov_b32 s{sPERM}, 0x07060302")
    A(f"  s_mov_b32 s{sMASK}, 0xffff0000")
    A(f"  s_lshl_b32 s{sREC}, s{sH}, 5")
    A(f"  v_mov_b32 v{DBGO}, s{sREC}")
    A(f"  s_add_u32 s{sREC}, s{sREC}, s{sI}")
    A(f"  s_lshl_b32 s{sREC}, s{sREC}, 12")
    A(f"  s_lshl_b32 s{sHB}, s{sH}, 17")
    A(f"  s_cmp_eq_u32 s{sW}, {warm_w}")
    A(f"  s_cselect_b32 s{sWARM}, {warm_it}, 63")
    A(f"  s_lshl_b32 s{sT2}, s{sW}, 12")
    A(f"  v_bfe_i32 v{MLANE}, v{LANE}, 2, 1")
    A(f"  v_and_b32 v{MLANE}, s{sMASK}, v{MLANE}")
    A(f"  v_mov_b32 v{M}, 0xff800000")
    A(f"  v_mov_b32 v{LS}, 0")
    A(f"  v_mov_b32 v{ONE}, 1")
    A(f"  v_mov_b32 v{FLG}, 16512")
    for r in range(36):
        A(f"  v_mov_b32 v{ACC+r}, 0")
    A(f"  v_and_b32 v{WA}, 16, v{G16}")
    A(f"  v_lshl_add_u32 v{WA}, v{WA}, 7, v{T3}")
    A(f"  v_add_u32 v{WA}, s{sT2}, v{WA}")
    A(f"  s_lshl_b32 s{sT}, s{sW}, 2")
    A(f"  s_add_u32 s{sT}, s{sT}, 16384")
    A(f"  v_lshl_add_u32 v{MLA}, v{LANE}, 4, s{sT}")
    A(f"  v_and_b32 v{T0}, 31, v{LANE}")
    A(f"  v_lshrrev_b32 v{T2}, 5, v{LANE}")
    A(f"  s_lshl_b32 s{sT}, s{sW}, 9")
    A(f"  v_lshl_add_u32 v{PUB}, v{T0}, 4, s{sT}")
    A(f"  v_lshl_add_u32 v{RA}, v{T2}, 11, v{PUB}")
    A(f"  v_lshl_add_u32 v{POL}, v{T2}, 16, v{PUB}")
    A(f"  s_lshl_b32 s{sT}, s{sW}, 4")
    A(f"  v_mov_b32 v{MA}, s{sT}")
    A(f"  s_add_u32 s{sT}, s{sT}, 2048")
    A(f"  v_writelane_b32 v{PUB}, s{sT}, 32")
    A(f"  v_lshl_add_u32 v{T1}, v{T2}, 4, v{T1}")
    A(f"  v_lshl_add_u32 v{MLO}, v{T1}, 12, s{sT}")
    A(f"  s_lshl_b32 s{sT}, s{sH}, 2")
    A(f"  s_add_u32 s{sT}, s{sT}, s{sW}")
    A(f"  s_lshl_b32 s{sT}, s{sT}, 8")
    A(f"  v_lshl_add_u32 v{OUTO}, v{LANE}, 3, s{sT}")
    A(f"  v_bfe_u32 v{T0}, v{LANE}, 2, 2")
    A(f"  v_lshl_add_u32 v{T3}, v{T0}, 6, s{sT2}")
    A(f"  v_bfe_u32 v{T0}, v{LANE}, 1, 1")
    A(f"  v_lshl_add_u32 v{T3}, v{T0}, 3, v{T3}")
    A(f"  v_and_b32 v{T0}, 1, v{LANE}")
    A(f"  v_lshl_add_u32 v{T3}, v{T0}, 5, v{T3}")
    A(f"  v_add_u32 v{T5}, 2048, v{T3}")
    A(f"  v_lshl_add_u32 v{T3}, v{G16}, 4, v{T3}")
    A(f"  v_add_u32 v{T4}, s{sT2}, v{G16}")
    A(f"  v_and_b32 v{T0}, 7, v{LANE}")
    A(f"  v_lshl_add_u32 v{T6}, v{T0}, 8, v{T4}")
    A(f"  s_lshl_b32 s{sT}, s{sW}, 10")
    A(f"  s_add_u32 s{sT}, s{sT}, 16640")
    A(f"  v_lshl_add_u32 v{T1}, v{LANE}, 3, s{sT}")
    A(f"  v_add_u32 v{SADDR}, s{sT}, v{G16}")
    A(f"  s_waitcnt vmcnt({32 - (late if latemode == 'all' else 0)})")
    A(f"  ds_write_b64 v{T1}, v[{PVS}:{PVS+1}]")
    A(f"  ds_write_b64 v{T1}, v[{PVZ}:{PVZ+1}] offset:512")
    A(f"  ds_write2_b64 v{T5}, v[{KZ}:{KZ+1}], v[{KZ+2}:{KZ+3}] offset0:0 offset1:2")
    HI, LO, TA = VP, VP + 4, VP + 8
    for r in range(4):
        a0, a1, k0, k1 = TA, TA + 1, TA + 2, TA + 3
        A(f"  v_lshlrev_b32 v{a0}, 16, v{Q0+r}")
        A(f"  v_and_b32 v{a1}, s{sMASK}, v{Q0+r}")
        A(f"  v_lshlrev_b32 v{k0}, 16, v{KS+r}")
        A(f"  v_and_b32 v{k1}, s{sMASK}, v{KS+r}")
        A(f"  v_mul_f32 v{a0}, v{a0}, v{k0}")
        A(f"  v_mul_f32 v{a1}, v{a1}, v{k1}")
        A(f"  v_cvt_pk_bf16_f32 v{HI+r}, v{a0}, v{a1}")
        A(f"  v_lshlrev_b32 v{k0}, 16, v{HI+r}")
        A(f"  v_and_b32 v{k1}, s{sMASK}, v{HI+r}")
        A(f"  v_sub_f32 v{a0}, v{a0}, v{k0}")
        A(f"  v_sub_f32 v{a1}, v{a1}, v{k1}")
        A(f"  v_cvt_pk_bf16_f32 v{LO+r}, v{a0}, v{a1}")
    A(f"  ds_write2_b64 v{T3}, v[{HI}:{HI+1}], v[{HI+2}:{HI+3}] offset0:0 offset1:2")
    A(f"  ds_write2_b64 v{T3}, v[{LO}:{LO+1}], v[{LO+2}:{LO+3}] offset0:128 offset1:130")
    A("  s_waitcnt lgkmcnt(0)")
    for s in range(4):
        A(f"  ds_read_b128 v[{QS+4*s}:{QS+4*s+3}], v{T6} offset:{64*s}")
    for s in range(4):
        A(f"  ds_read_b128 v[{VP+4*s}:{VP+4*s+3}], v{T4} offset:{2048 + 64*s}")
    A("  s_waitcnt lgkmcnt(0)")
    for s in range(4):
        A(f"  v_mfma_f32_16x16x32_bf16 v[{S}:{S+3}], v[{VP+4*s}:{VP+4*s+3}], v[{QS+4*s}:{QS+4*s+3}], {'0' if s == 0 else f'v[{S}:{S+3}]'}")
    A("  s_nop 7")
    A(f"  v_add_f32_dpp v{CORR}, v{S}, v{S} row_ror:4 {DPPF}")
    if stamp:
        A("  s_memrealtime s[74:75]")
    A("  s_branch L_body")
    A("L_loop:")
    if stamp:
        A(f"  s_cmp_lg_u32 s{sIT}, 1")
        A("  s_cbranch_scc1 L_st1")
        A("  s_memrealtime s[76:77]")
        A("L_st1:")
    setoffs()
    def body(nl, last_copy):
        issued = [32 - nl]
        def wait(t, n):
            A(f"  s_waitcnt vmcnt({issued[0] - POS[(t, n)] - 1})")
        cnt = [0]
        def more():
            cnt[0] += 1
            if cnt[0] <= first: return
            for _ in range(per):
                if issued[0] < 32:
                    t, n = SEQ[issued[0]]
                    A(kload(n) if t == "k" else vload(n))
                    issued[0] += 1
        A(f"  v_add_u32 v{T0}, s{sS}, v{SADDR}")
        A(f"  ds_read_b128 v[{VS}:{VS+3}], v{T0}")
        A(f"  ds_read_b128 v[{VZ}:{VZ+3}], v{T0} offset:512")
        pend = []
        def kstep(T, s):
            a = KB + 4 * (8 * T + 2 * s)
            b = a + 4
            wait("k", 8 * T + 2 * s)
            for e in range(4):
                A(f"  v_cvt_f32_i32 v{a+e}, v{a+e}")
                if e == 1 and pend:
                    A(pend.pop(0))
            A(f"  v_cvt_pk_bf16_f32 v{a}, v{a}, v{a+1}")
            A(f"  v_cvt_pk_bf16_f32 v{a+1}, v{a+2}, v{a+3}")
            wait("k", 8 * T + 2 * s + 1)
            for e in range(4):
                A(f"  v_cvt_f32_i32 v{b+e}, v{b+e}")
            A(f"  v_cvt_pk_bf16_f32 v{a+2}, v{b}, v{b+1}")
            A(f"  v_cvt_pk_bf16_f32 v{a+3}, v{b+2}, v{b+3}")
            d = S + 4 * T
            pend.append(f"  v_mfma_f32_16x16x32_bf16 v[{d}:{d+3}], v[{a}:{a+3}], v[{QS+4*s}:{QS+4*s+3}], {'0' if s == 0 else f'v[{d}:{d+3}]'}")
            more()
        def vstep(dh, r):
            a = VB + 4 * (8 * dh + 2 * r)
            b = a + 4
            wait("v", 8 * dh + 2 * r)
            for e in range(4):
                A(f"  v_cvt_f32_i32 v{a+e}, v{a+e}")
                if e >= 1 and pend:
                    A(pend.pop(0))
            wait("v", 8 * dh + 2 * r + 1)
            for e in range(4):
                A(f"  v_cvt_f32_i32 v{b+e}, v{b+e}")
                if pend:
                    A(pend.pop(0))
            assert not pend
            for c in range(4):
                A(f"  v_cvt_pk_bf16_f32 v{VP+4*c+r}, v{a+c}, v{b+c}")
            more()
        def pv(dh):
            for c in range(4):
                ac = ACC + 16 * dh + 4 * c
                vp = VP + 4 * c
                pend.append(f"  v_mfma_f32_16x16x32_bf16 v[{ac}:{ac+3}], v[{PA}:{PA+3}], v[{vp}:{vp+3}], v[{ac}:{ac+3}]")
        def softmax():
            A(f"  s_waitcnt lgkmcnt(0)")
            A(f"  v_lshlrev_b32 v{VSF}, 16, v{VS}")
            A(pend.pop(0))
            assert not pend
            A(f"  v_and_b32 v{VSF+1}, s{sMASK}, v{VS}")
            for r in range(1, 4):
                A(f"  v_lshlrev_b32 v{VSF+2*r}, 16, v{VS+r}")
                A(f"  v_and_b32 v{VSF+2*r+1}, s{sMASK}, v{VS+r}")
            for j in range(8):
                A(f"  v_add_f32_dpp v{S+j}, v{S+j}, v{S+j} row_ror:4 {DPPF}")
            A(f"  v_max3_f32 v{T0}, v{S}, v{S+1}, v{S+2}")
            A(f"  v_max3_f32 v{T1}, v{S+3}, v{S+4}, v{S+5}")
            A(f"  v_max3_f32 v{T0}, v{T0}, v{S+6}, v{S+7}")
            A(f"  v_max_f32 v{T0}, v{T0}, v{T1}")
            A(f"  v_mov_b32 v{T1}, v{T0}")
            A("  s_nop 1")
            A(f"  v_permlane32_swap_b32 v{T1}, v{T0}")
            A(f"  v_max_f32 v{T0}, v{T0}, v{T1}")
            A(f"  v_mov_b32 v{T1}, v{T0}")
            A("  s_nop 1")
            A(f"  v_permlane16_swap_b32 v{T1}, v{T0}")
            A(f"  v_max_f32 v{T0}, v{T0}, v{T1}")
            A(f"  v_mul_f32 v{T0}, s{sC}, v{T0}")
            A(f"  v_max_f32 v{T0}, v{T0}, v{M}")
            A(f"  v_sub_f32 v{T1}, v{M}, v{T0}")
            A(f"  v_mov_b32 v{M}, v{T0}")
            A(f"  v_exp_f32 v{T1}, v{T1}")
            for j in range(8):
                A(f"  v_fma_f32 v{S+j}, v{S+j}, s{sC}, -v{M}")
            for j in range(8):
                A(f"  v_exp_f32 v{S+j}, v{S+j}")
            A(f"  v_mul_f32 v{LS}, v{LS}, v{T1}")
            A(f"  v_add_f32 v{T2}, v{S}, v{S+1}")
            A(f"  v_add_f32 v{T3}, v{S+2}, v{S+3}")
            A(f"  v_add_f32 v{T4}, v{S+4}, v{S+5}")
            A(f"  v_add_f32 v{T5}, v{S+6}, v{S+7}")
            for j in range(8):
                A(f"  v_mul_f32 v{S+j}, v{S+j}, v{VSF+j}")
            A(f"  v_add_f32 v{T2}, v{T2}, v{T3}")
            A(f"  v_add_f32 v{T4}, v{T4}, v{T5}")
            for j in range(8):
                A(f"  v_and_b32 v{VSF+j}, v{MLANE}, v{S+j}")
            A(f"  v_add_f32 v{LS}, v{LS}, v{T2}")
            for j in range(8):
                A(f"  v_sub_f32 v{S+j}, v{S+j}, v{VSF+j}")
            A(f"  v_add_f32 v{LS}, v{LS}, v{T4}")
            for r in range(4):
                A(f"  v_perm_b32 v{PA+r}, v{S+2*r+1}, v{S+2*r}, s{sPERM}")
            for r in range(36):
                i = r % 4
                A(f"  v_mul_f32_dpp v{ACC+r}, v{T1}, v{ACC+r} quad_perm:[{i},{i},{i},{i}] {DPPF}")
            A("  s_nop 1")
            A(f"  v_mfma_f32_16x16x32_bf16 v[{Z}:{Z+3}], v[{PA}:{PA+3}], v[{VZ}:{VZ+3}], v[{Z}:{Z+3}]")
        if order == 'kv':
            for T in range(2):
                for s_ in range(4): kstep(T, s_)
            assert issued[0] == 32
            if latemode == 'last2':
                A(f"  s_cmp_lg_u32 s{sIT}, {NIT-1}")
                A("  s_cbranch_scc1 L_sm")
                for t, n in SEQ[32 - late:]:
                    A(vload(n))
                A("L_sm:")
            softmax()
            if last_copy and early:
                A(f"  v_mov_b32 v{T1}, v{LS}")
                A(f"  v_fma_f32 v{M}, v{CORR}, -s{sC}, v{M}")
                A("  s_nop 0")
                A(f"  v_permlane32_swap_b32 v{T1}, v{LS}")
                A(f"  v_add_f32 v{LS}, v{LS}, v{T1}")
                A(f"  v_mov_b32 v{T1}, v{LS}")
                A("  s_nop 1")
                A(f"  v_permlane16_swap_b32 v{T1}, v{LS}")
                A(f"  v_add_f32 v{LS}, v{LS}, v{T1}")
                A("  s_mov_b64 exec, 15")
                A(f"  ds_write_b32 v{MLA}, v{M}")
                A(f"  ds_write_b32 v{MLA}, v{LS} offset:64")
                A("  s_mov_b64 exec, -1")
            for r in range(4): vstep(0, r)
            pv(0)
            for r in range(4):
                vstep(1, r)
                if last_copy and early and r in (1, 2):
                    for i in (2 * (r - 1), 2 * (r - 1) + 1):
                        for c in range(4):
                            A(f"  v_sub_f32 v{KB+4*i+c}, v{ACC+4*c+i}, v{Z+i}")
                        A(f"  ds_write_b128 v{WA}, v[{KB+4*i}:{KB+4*i+3}] offset:{512*i}")
            pv(1)
            if last_copy and early:
                A("  s_nop 1")
                for p in pend: A(p)
                return
        else:
            for s_ in range(4): kstep(0, s_)
            for r in range(4): vstep(0, r)
            assert issued[0] == 32
            for s_ in range(4): kstep(1, s_)
            softmax()
            pv(0)
            for r in range(4): vstep(1, r)
            pv(1)
        A(f"  s_add_u32 s{sIT}, s{sIT}, 1")
        A(f"  s_cmp_lg_u32 s{sIT}, {NIT}")
        for p in pend:
            A(p)
    if late and latemode == 'last':
        A(f"  s_cmp_ge_u32 s{sIT}, {NIT-nlate}")
        A("  s_cbranch_scc1 L_last")
        burst(0)
        A("L_body:")
        body(0, False)
        A("  s_branch L_loop")
        A("L_last:")
        burst(late)
        body(late, True)
        if nlate > 1:
            A("  s_cbranch_scc1 L_loop")
    elif latemode == 'last2':
        A(f"  s_cmp_eq_u32 s{sIT}, {NIT-1}")
        A("  s_cbranch_scc0 L_full")
        burst(late)
        A(f"  s_waitcnt vmcnt({16 - late})")
        A("  s_branch L_body")
        A("L_full:")
        burst(0)
        A("L_body:")
        body(0, False)
        A("  s_cbranch_scc1 L_loop")
    else:
        burst(late)
        A("L_body:")
        body(late, False)
        A("  s_cbranch_scc1 L_loop")
    if stamp:
        A("  s_memrealtime s[62:63]")
    TR = KB
    def touch():
        A("  s_mov_b64 exec, 1")
        if "w" in tlb: A(f"  buffer_load_dword v{T2}, v{DBGO}, {WSRD}, s{sREC} offen offset:3072 sc1")
        if "d" in tlb: A(f"  global_load_dword v{T3}, v{DBGO}, s[20:21] offset:128 sc1")
        if "o" in tlb: A(f"  global_load_dword v{T4}, v{OUTO}, s[18:19] sc1")
        A("  s_mov_b64 exec, -1")
    if tlb: touch()
    if early:
        A("  s_nop 7")
        for i in range(4):
            for c in range(4):
                A(f"  v_sub_f32 v{TR+16+4*i+c}, v{ACC+16+4*c+i}, v{Z+i}")
            t = TR + 16 + 4 * i
            A(f"  ds_write_b128 v{WA}, v[{t}:{t+3}] offset:{512*i + 256}")
        A("  s_waitcnt lgkmcnt(0)")
        A("  s_barrier")
    else:
        A(f"  v_mov_b32 v{T1}, v{LS}")
        A(f"  v_fma_f32 v{M}, v{CORR}, -s{sC}, v{M}")
        for i in range(4):
            for c in range(4):
                A(f"  v_sub_f32 v{TR+4*i+c}, v{ACC+4*c+i}, v{Z+i}")
            if i == 0:
                A(f"  v_permlane32_swap_b32 v{T1}, v{LS}")
                A(f"  v_add_f32 v{LS}, v{LS}, v{T1}")
                A(f"  v_mov_b32 v{T1}, v{LS}")
            if i == 1:
                A(f"  v_permlane16_swap_b32 v{T1}, v{LS}")
                A(f"  v_add_f32 v{LS}, v{LS}, v{T1}")
        A("  s_mov_b64 exec, 15")
        A(f"  ds_write_b32 v{MLA}, v{M}")
        A(f"  ds_write_b32 v{MLA}, v{LS} offset:64")
        A("  s_mov_b32 exec_lo, -1")
        for i in range(4):
            t = TR + 4 * i
            A(f"  ds_write_b128 v{WA}, v[{t}:{t+3}] offset:{512*i}")
        for i in range(4):
            for c in range(4):
                A(f"  v_sub_f32 v{TR+16+4*i+c}, v{ACC+16+4*c+i}, v{Z+i}")
            t = TR + 16 + 4 * i
            A(f"  ds_write_b128 v{WA}, v[{t}:{t+3}] offset:{512*i + 256}")
        A("  s_mov_b64 exec, -1")
        A("  s_waitcnt lgkmcnt(0)")
        A("  s_barrier")
    E = []
    B = E.append
    MW, LW, DAT, O, U = VP, VP + 4, VB, S, S + 4
    B(f"  ds_read_b128 v[{MW}:{MW+3}], v{MA} offset:16384")
    B(f"  ds_read_b128 v[{LW}:{LW+3}], v{MA} offset:16448")
    for w in range(4):
        t = DAT + 4 * w
        B(f"  ds_read_b128 v[{t}:{t+3}], v{RA} offset:{4096*w}")
    B("  s_waitcnt lgkmcnt(4)")
    B(f"  v_max3_f32 v{T0}, v{MW}, v{MW+1}, v{MW+2}")
    B(f"  v_max_f32 v{T0}, v{T0}, v{MW+3}")
    for w in range(4):
        B(f"  v_sub_f32 v{MW+w}, v{MW+w}, v{T0}")
    for w in range(4):
        B(f"  v_exp_f32 v{MW+w}, v{MW+w}")
    B("  s_waitcnt lgkmcnt(0)")
    for e in range(4):
        B(f"  v_mul_f32 v{O+e}, v{MW}, v{DAT+e}")
    B(f"  v_mul_f32 v{T1}, v{MW}, v{LW}")
    for w in range(1, 4):
        for e in range(4):
            B(f"  v_fmac_f32 v{O+e}, v{MW+w}, v{DAT+4*w+e}")
        B(f"  v_fmac_f32 v{T1}, v{MW+w}, v{LW+w}")
    for e in range(4):
        B(f"  v_mov_b32 v{U+e}, v{O+e}")
    B("  s_nop 0")
    for e in range(4):
        B(f"  v_permlane32_swap_b32 v{U+e}, v{O+e}")
    for e in range(4):
        B(f"  v_add_f32 v{O+e}, v{O+e}, v{U+e}")
    B("  s_mov_b32 exec_lo, 0")
    B(f"  v_mov_b32 v{O}, v{T0}")
    B(f"  v_mov_b32 v{O+1}, v{T1}")
    B("  s_mov_b32 exec_lo, -1")
    B("  s_mov_b32 exec_hi, 1")
    B(f"  buffer_store_dwordx4 v[{O}:{O+3}], v{PUB}, {WSRD}, s{sREC} offen {pubf}")
    B(f"  s_cmp_lg_u32 s{sW}, 0")
    B("  s_waitcnt vmcnt(0)")
    B("  s_barrier")
    pfi = f"  buffer_load_dwordx4 v[{DAT}:{DAT+3}], v{PUB}, {WSRD}, s{sREC} offen {pf}"
    B("  s_cbranch_scc1 L_wait0")
    B("  s_mov_b64 exec, 1")
    B(f"  global_atomic_add v{CNT}, v{DBGO}, v{ONE}, s[20:21] sc0 sc1")
    if pf is not None:
        B("  s_mov_b32 exec_lo, -1")
        B("  s_mov_b32 exec_hi, 1")
        B(pfi)
        B("  s_mov_b64 exec, 1")
        B("  s_waitcnt vmcnt(1)")
    else:
        B("  s_waitcnt vmcnt(0)")
    B(f"  ds_write_b32 v{FLG}, v{CNT}")
    B("  s_waitcnt lgkmcnt(0)")
    B("  s_branch L_wait")
    B("L_wait0:")
    if pf is not None:
        B(pfi)
    B("L_wait:")
    B("  s_mov_b64 exec, -1")
    B("  s_barrier")
    B(f"  ds_read_b32 v{CNT}, v{FLG}")
    B("  s_waitcnt lgkmcnt(0)")
    B(f"  v_readfirstlane_b32 s{sT}, v{CNT}")
    B(f"  s_cmp_lg_u32 s{sT}, 31")
    B("  s_cbranch_scc1 L_done")
    F = S
    for _ in range(dly_tail): B("  s_sleep 37")
    B(f"  buffer_load_dwordx2 v[{F}:{F+1}], v{MLO}, {WSRD}, s{sHB} offen sc1")
    if not split: n1 = 16
    def dl(k):
        bb = KB + 4 * k
        B(f"  buffer_load_dwordx4 v[{bb}:{bb+3}], v{POL}, {WSRD}, s{sHB} offen sc1")
        if k < 15:
            B(f"  s_add_u32 s{sHB}, s{sHB}, 4096")
    for k in range(n1): dl(k)
    for e in range(4):
        B(f"  v_mov_b32 v{PA+e}, 0")
    B(f"  s_waitcnt vmcnt({n1})")
    for k in range(n1, 16): dl(k)
    B(f"  v_max_f32_dpp v{T0}, v{F}, v{F} row_ror:8 {DPPF}")
    for sh in (4, 2, 1):
        B("  s_nop 1")
        B(f"  v_max_f32_dpp v{T0}, v{T0}, v{T0} row_ror:{sh} {DPPF}")
    B(f"  v_mov_b32 v{T1}, v{T0}")
    B("  s_nop 1")
    B(f"  v_permlane32_swap_b32 v{T1}, v{T0}")
    B(f"  v_max_f32 v{T0}, v{T0}, v{T1}")
    B(f"  v_sub_f32 v{F}, v{F}, v{T0}")
    B(f"  v_exp_f32 v{F}, v{F}")
    B("  s_nop 0")
    B(f"  v_mul_f32 v{T0}, v{F}, v{F+1}")
    red = [f"  v_add_f32_dpp v{T0}, v{T0}, v{T0} row_ror:{sh} {DPPF}" for sh in (8, 4, 2, 1)]
    red += [f"  v_mov_b32 v{T1}, v{T0}", f"  v_permlane32_swap_b32 v{T1}, v{T0}", f"  v_add_f32 v{T0}, v{T0}, v{T1}", f"  v_rcp_f32 v{T0}, v{T0}"]
    for k in range(16):
        bb = KB + 4 * k
        B(f"  s_waitcnt vmcnt({15-k})")
        for e in range(4):
            B(f"  v_fmac_f32_dpp v{PA+e}, v{F}, v{bb+e} row_newbcast:{k} {DPPF}")
        if red:
            B(red.pop(0))
    for e in range(4):
        B(f"  v_mov_b32 v{VS+e}, v{PA+e}")
    B("  s_nop 0")
    for e in range(4):
        B(f"  v_permlane32_swap_b32 v{VS+e}, v{PA+e}")
    for e in range(4):
        B(f"  v_add_f32 v{PA+e}, v{PA+e}, v{VS+e}")
    for e in range(4):
        B(f"  v_mul_f32 v{PA+e}, v{PA+e}, v{T0}")
    B(f"  v_cvt_pk_bf16_f32 v{PA}, v{PA}, v{PA+1}")
    B(f"  v_cvt_pk_bf16_f32 v{PA+1}, v{PA+2}, v{PA+3}")
    B("  s_mov_b32 exec_hi, 0")
    B(f"  global_store_dwordx2 v{OUTO}, v[{PA}:{PA+1}], s[18:19] {outsc}")
    if warm:
        def size(ins):
            t = ins.split()
            if ins.endswith(":"): return 0
            op = t[0]
            if op.startswith(("ds_", "buffer_", "global_", "v_max3", "v_cvt_pk", "v_mfma", "v_fma_", "v_perm_b32", "v_lshl_add", "v_bfi", "v_readlane", "v_writelane")) or "dpp" in op: return 8
            if op == "s_add_u32" and t[-1] == "4096": return 8
            return 4
        n = 0
        acc = 0
        A("L_isl0:")
        A("  s_cbranch_execz L_isl1")
        for ins in E:
            sz = size(ins)
            if acc + sz > warm - 4:
                n += 1
                A(f"L_isl{n}:")
                A(f"  s_cbranch_execz L_isl{n+1}")
                acc = 0
            A(ins)
            acc += sz
        n += 1
        A(f"L_isl{n}:")
        A("  s_cbranch_execz L_warmback")
    else:
        L.extend(E)
    A("L_done:")
    if stamp:
        A("  s_mov_b64 exec, -1")
        A("  s_waitcnt vmcnt(0)")
        A("  s_memrealtime s[64:65]")
        A("  s_getreg_b32 s66, hwreg(HW_REG_XCC_ID)")
        A("  s_waitcnt lgkmcnt(0)")
        A("  v_mov_b32 v16, s60"); A("  v_mov_b32 v17, s64"); A("  v_mov_b32 v18, s66"); A("  v_mov_b32 v19, s62")
        A(f"  s_lshl_b32 s{sT}, s2, 2")
        A(f"  s_add_u32 s{sT}, s{sT}, s{sW}")
        A(f"  s_lshl_b32 s{sT}, s{sT}, 5")
        A(f"  s_add_u32 s{sT}, s{sT}, {536870912 - 262144}")
        A(f"  v_mov_b32 v1, s{sT}")
        A("  v_mov_b32 v20, s72"); A("  v_mov_b32 v21, s74"); A("  v_mov_b32 v22, s76"); A("  v_mov_b32 v23, s76")
        A("  s_mov_b64 exec, 1")
        A("  global_store_dwordx4 v1, v[16:19], s[22:23]")
        A("  global_store_dwordx4 v1, v[20:23], s[22:23] offset:16")
    A("L_end:")
    A("  s_endpgm")
    A('.section .rodata,"a"'); A(".p2align 6")
    A(f".amdhsa_kernel {NAME}_kernel")
    A(f"  .amdhsa_next_free_vgpr 256"); A("  .amdhsa_next_free_sgpr 80"); A(f"  .amdhsa_accum_offset 256")
    A("  .amdhsa_group_segment_fixed_size 0"); A("  .amdhsa_kernarg_size 80"); A("  .amdhsa_user_sgpr_count 2")
    A("  .amdhsa_user_sgpr_kernarg_segment_ptr 1"); A("  .amdhsa_system_sgpr_workgroup_id_x 1")
    A(".end_amdhsa_kernel")
    return "\n".join(L) + "\n"

if __name__ == "__main__":
    out = sys.argv[1]
    kw = eval("dict(" + (sys.argv[2] if len(sys.argv) > 2 else "") + ")")
    open(out, "w").write(gen(**kw))
```

```python
import sys, math, struct
NAME = "standalone__kv_cache_quant_int4_int2_kv_with_per_channel_or_per_token_scales__decode"
HEADER = open("cdna_kernels/" + NAME + ".s.ref").read().split("; Override launch geometry")[0]

def f32bits(x):
    return struct.unpack("<I", struct.pack("<f", x))[0]

def gen(x=True, itpos=4, ph=1, flags="nt", stamp=False, qflags="", sflags="nt", outsc="",
        warm=0, warm_it=3, warm_w=1, split=True, pf="sc1", n1=8, tlb=None, nlast=0, lastk='', lastv='nt', order='kv', late=16, latemode='last', per=16, nlate=1, first=7, early=True, pubf='sc1', recstride=4096, dly_tail=0, dly_head=0, padto=0, padref=None):
    NWG, W, NIT = 256, 4, 8
    L = []
    A = L.append
    LDS = 16640 + 4096
    A(HEADER.rstrip("\n"))
    A(f"; @launch grid=({NWG},1,1) block=(256,1,1) lds={LDS}")
    A('.amdgcn_target "amdgcn-amd-amdhsa--gfx950"')
    A(".text")
    A(f".globl {NAME}_kernel")
    A(".p2align 8")
    A(f".type {NAME}_kernel,@function")
    A(f"{NAME}_kernel:")
    LANE, KOFF, VOFF, G16, MLANE, M, LS, CORR = 1, 2, 3, 4, 5, 6, 7, 8
    T0, T1, T2, T3, T4, T5, T6 = 9, 10, 11, 12, 13, 14, 15
    QS = 16; ACC = 32; Z = 64; S = 68; PA = 76; VS = 80; VZ = 84; VSF = 88; VP = 96
    SADDR, PUB, POL, WA, RA, MLA, MA, MLO, OUTO, FLG, DBGO, ONE, CNT = range(112, 125)
    KB = 128
    VB = 192
    sW, sH, sI, sJ, sKV, sS, sIT, sT = 24, 25, 26, 27, 28, 29, 30, 31
    sC, sPERM, sMASK, sBASE, sPH, sREC, sT2, sHB, sWARM = 52, 53, 54, 55, 56, 57, 58, 59, 44
    KSRD, VSRD, WSRD = "s[32:35]", "s[36:39]", "s[40:43]"
    C = math.log2(math.e) / math.sqrt(128.0)
    DPPF = "row_mask:0xf bank_mask:0xf"

    A(f"  s_cmp_ge_u32 s2, {NWG}")
    A("  s_cbranch_scc1 L_end")
    A("  s_load_dwordx16 s[4:19], s[0:1], 0")
    A("  s_load_dwordx4 s[20:23], s[0:1], 64")
    if stamp or padto:
        A("  s_memrealtime s[60:61]")
    A(f"  v_lshrrev_b32 v{T0}, 6, v0")
    A(f"  v_and_b32 v{LANE}, 63, v0")
    A(f"  v_readfirstlane_b32 s{sW}, v{T0}")
    A(f"  v_and_b32 v{T1}, 15, v{LANE}")
    A(f"  v_lshrrev_b32 v{T2}, 4, v{LANE}")
    if x:
        A(f"  s_and_b32 s{sH}, s2, 7")
        A(f"  s_lshr_b32 s{sI}, s2, 3")
    else:
        A(f"  s_lshr_b32 s{sH}, s2, 5")
        A(f"  s_and_b32 s{sI}, s2, 31")
    A(f"  v_lshlrev_b32 v{G16}, 4, v{T2}")
    A(f"  v_lshrrev_b32 v{T3}, 2, v{T1}")
    A(f"  v_lshl_add_u32 v{KOFF}, v{T3}, 12, v{G16}")
    A(f"  v_and_b32 v{T3}, 3, v{LANE}")
    A(f"  v_lshl_add_u32 v{KOFF}, v{T3}, 9, v{KOFF}")
    A(f"  v_lshlrev_b32 v{T3}, 4, v{T1}")
    A(f"  v_lshl_add_u32 v{VOFF}, v{T2}, 12, v{T3}")
    A(f"  s_lshl_b32 s{sJ}, s{sW}, 5")
    A(f"  s_add_u32 s{sJ}, s{sJ}, s{sI}")
    A(f"  s_and_b32 s{sT}, s{sJ}, {(1 << itpos) - 1}")
    A(f"  s_lshr_b32 s{sT2}, s{sJ}, {itpos}")
    A(f"  s_lshl_b32 s{sT2}, s{sT2}, {itpos + 3}")
    A(f"  s_or_b32 s{sT}, s{sT}, s{sT2}")
    A(f"  s_lshl_b32 s{sBASE}, s{sT}, 14")
    A(f"  s_lshl_b32 s{sT}, s{sH}, 24")
    A(f"  s_add_u32 s{sBASE}, s{sBASE}, s{sT}")
    A(f"  s_mul_i32 s{sPH}, s{sH}, {ph}")
    A(f"  s_mov_b32 s{sIT}, 0")
    assert itpos <= 6
    A(f"  s_lshl_b32 s{sT}, s{sH}, 10")
    A(f"  v_lshl_add_u32 v{T5}, v{LANE}, 4, s{sT}")
    A(f"  s_lshl_b32 s{sT}, s{sH}, 9")
    A(f"  s_lshr_b32 s{sT2}, s{sW}, 1")
    A(f"  s_lshl_b32 s{sT2}, s{sT2}, 8")
    A(f"  s_add_u32 s{sT}, s{sT}, s{sT2}")
    A(f"  v_add_u32 v{T6}, s{sT}, v{T3}")
    A(f"  s_lshr_b32 s{sT}, s{sBASE}, 8")
    A(f"  v_and_b32 v{T4}, 7, v{LANE}")
    A(f"  v_lshl_add_u32 v{T4}, v{T4}, 3, s{sT}")
    A(f"  v_lshrrev_b32 v{T0}, 3, v{LANE}")
    A(f"  v_lshl_add_u32 v{T4}, v{T0}, {6 + itpos}, v{T4}")
    def setoffs():
        A(f"  s_add_u32 s{sT}, s{sIT}, s{sPH}")
        A(f"  s_and_b32 s{sT}, s{sT}, 7")
        A(f"  s_lshl_b32 s{sS}, s{sT}, 6")
        A(f"  s_lshl_b32 s{sT}, s{sT}, {14 + itpos}")
        A(f"  s_add_u32 s{sKV}, s{sT}, s{sBASE}")
    setoffs()
    A("  s_mov_b32 s34, 0x8000000"); A("  s_mov_b32 s35, 0x20000")
    A("  s_mov_b32 s38, 0x8000000"); A("  s_mov_b32 s39, 0x20000")
    A("  s_mov_b32 s42, 0x100000"); A("  s_mov_b32 s43, 0x20000")
    A("  s_waitcnt lgkmcnt(0)")
    for _ in range(dly_head): A("  s_sleep 37")
    A("  s_mov_b32 s32, s6"); A("  s_mov_b32 s33, s7")
    A("  s_mov_b32 s36, s8"); A("  s_mov_b32 s37, s9")
    A("  s_mov_b32 s40, s22"); A("  s_mov_b32 s41, s23")
    Q0, KS, KZ, PVS, PVZ = S, S + 4, PA, VS, VS + 2
    A(f"  global_load_dwordx4 v[{Q0}:{Q0+3}], v{T5}, s[4:5] {qflags}")
    A(f"  global_load_dwordx4 v[{KS}:{KS+3}], v{T6}, s[10:11] {qflags}")
    A(f"  global_load_dwordx4 v[{KZ}:{KZ+3}], v{T6}, s[12:13] {qflags}")
    A(f"  global_load_dwordx2 v[{PVS}:{PVS+1}], v{T4}, s[14:15] {sflags}")
    A(f"  global_load_dwordx2 v[{PVZ}:{PVZ+1}], v{T4}, s[16:17] {sflags}")
    def kload(n):
        T, i = n // 8, n % 8
        b = KB + 4 * n
        return f"  buffer_load_dwordx4 v[{b}:{b+3}], v{KOFF}, {KSRD}, s{sKV} offen offset:{2048*T + 64*i} {flags}"
    def vload(n):
        dh, j = n // 8, n % 8
        b = VB + 4 * n
        return f"  buffer_load_dwordx4 v[{b}:{b+3}], v{VOFF}, {VSRD}, s{sKV} offen offset:{512*j + 256*dh} {flags}"
    if order == 'kv':
        SEQ = [("k", n) for n in range(16)] + [("v", n) for n in range(16)]
    else:
        SEQ = [("k", n) for n in range(8)] + [("v", n) for n in range(8)] + [("k", n) for n in range(8, 16)] + [("v", n) for n in range(8, 16)]
    POS = {x: i for i, x in enumerate(SEQ)}
    def burst(nl=0):
        for t, n in SEQ[:32 - nl]:
            A(kload(n) if t == "k" else vload(n))
    burst(late if latemode == 'all' else 0)
    if stamp:
        A("  s_memrealtime s[72:73]")
    A(f"  s_mov_b32 s{sC}, {f32bits(C):#x}")
    A(f"  s_mov_b32 s{sPERM}, 0x07060302")
    A(f"  s_mov_b32 s{sMASK}, 0xffff0000")
    A(f"  s_lshl_b32 s{sREC}, s{sH}, 5")
    A(f"  v_mov_b32 v{DBGO}, s{sREC}")
    A(f"  s_add_u32 s{sREC}, s{sREC}, s{sI}")
    A(f"  s_lshl_b32 s{sREC}, s{sREC}, 12")
    A(f"  s_lshl_b32 s{sHB}, s{sH}, 17")
    A(f"  s_cmp_eq_u32 s{sW}, {warm_w}")
    A(f"  s_cselect_b32 s{sWARM}, {warm_it}, 63")
    A(f"  s_lshl_b32 s{sT2}, s{sW}, 12")
    A(f"  v_bfe_i32 v{MLANE}, v{LANE}, 2, 1")
    A(f"  v_and_b32 v{MLANE}, s{sMASK}, v{MLANE}")
    A(f"  v_mov_b32 v{M}, 0xff800000")
    A(f"  v_mov_b32 v{LS}, 0")
    A(f"  v_mov_b32 v{ONE}, 1")
    A(f"  v_mov_b32 v{FLG}, 16512")
    for r in range(36):
        A(f"  v_mov_b32 v{ACC+r}, 0")
    A(f"  v_and_b32 v{WA}, 16, v{G16}")
    A(f"  v_lshl_add_u32 v{WA}, v{WA}, 7, v{T3}")
    A(f"  v_add_u32 v{WA}, s{sT2}, v{WA}")
    A(f"  s_lshl_b32 s{sT}, s{sW}, 2")
    A(f"  s_add_u32 s{sT}, s{sT}, 16384")
    A(f"  v_lshl_add_u32 v{MLA}, v{LANE}, 4, s{sT}")
    A(f"  v_and_b32 v{T0}, 31, v{LANE}")
    A(f"  v_lshrrev_b32 v{T2}, 5, v{LANE}")
    A(f"  s_lshl_b32 s{sT}, s{sW}, 9")
    A(f"  v_lshl_add_u32 v{PUB}, v{T0}, 4, s{sT}")
    A(f"  v_lshl_add_u32 v{RA}, v{T2}, 11, v{PUB}")
    A(f"  v_lshl_add_u32 v{POL}, v{T2}, 16, v{PUB}")
    A(f"  s_lshl_b32 s{sT}, s{sW}, 4")
    A(f"  v_mov_b32 v{MA}, s{sT}")
    A(f"  s_add_u32 s{sT}, s{sT}, 2048")
    A(f"  v_writelane_b32 v{PUB}, s{sT}, 32")
    A(f"  v_lshl_add_u32 v{T1}, v{T2}, 4, v{T1}")
    A(f"  v_lshl_add_u32 v{MLO}, v{T1}, 12, s{sT}")
    A(f"  s_lshl_b32 s{sT}, s{sH}, 2")
    A(f"  s_add_u32 s{sT}, s{sT}, s{sW}")
    A(f"  s_lshl_b32 s{sT}, s{sT}, 8")
    A(f"  v_lshl_add_u32 v{OUTO}, v{LANE}, 3, s{sT}")
    A(f"  v_bfe_u32 v{T0}, v{LANE}, 2, 2")
    A(f"  v_lshl_add_u32 v{T3}, v{T0}, 6, s{sT2}")
    A(f"  v_bfe_u32 v{T0}, v{LANE}, 1, 1")
    A(f"  v_lshl_add_u32 v{T3}, v{T0}, 3, v{T3}")
    A(f"  v_and_b32 v{T0}, 1, v{LANE}")
    A(f"  v_lshl_add_u32 v{T3}, v{T0}, 5, v{T3}")
    A(f"  v_add_u32 v{T5}, 2048, v{T3}")
    A(f"  v_lshl_add_u32 v{T3}, v{G16}, 4, v{T3}")
    A(f"  v_add_u32 v{T4}, s{sT2}, v{G16}")
    A(f"  v_and_b32 v{T0}, 7, v{LANE}")
    A(f"  v_lshl_add_u32 v{T6}, v{T0}, 8, v{T4}")
    A(f"  s_lshl_b32 s{sT}, s{sW}, 10")
    A(f"  s_add_u32 s{sT}, s{sT}, 16640")
    A(f"  v_lshl_add_u32 v{T1}, v{LANE}, 3, s{sT}")
    A(f"  v_add_u32 v{SADDR}, s{sT}, v{G16}")
    A(f"  s_waitcnt vmcnt({32 - (late if latemode == 'all' else 0)})")
    A(f"  ds_write_b64 v{T1}, v[{PVS}:{PVS+1}]")
    A(f"  ds_write_b64 v{T1}, v[{PVZ}:{PVZ+1}] offset:512")
    A(f"  ds_write2_b64 v{T5}, v[{KZ}:{KZ+1}], v[{KZ+2}:{KZ+3}] offset0:0 offset1:2")
    HI, LO, TA = VP, VP + 4, VP + 8
    for r in range(4):
        a0, a1, k0, k1 = TA, TA + 1, TA + 2, TA + 3
        A(f"  v_lshlrev_b32 v{a0}, 16, v{Q0+r}")
        A(f"  v_and_b32 v{a1}, s{sMASK}, v{Q0+r}")
        A(f"  v_lshlrev_b32 v{k0}, 16, v{KS+r}")
        A(f"  v_and_b32 v{k1}, s{sMASK}, v{KS+r}")
        A(f"  v_mul_f32 v{a0}, v{a0}, v{k0}")
        A(f"  v_mul_f32 v{a1}, v{a1}, v{k1}")
        A(f"  v_cvt_pk_bf16_f32 v{HI+r}, v{a0}, v{a1}")
        A(f"  v_lshlrev_b32 v{k0}, 16, v{HI+r}")
        A(f"  v_and_b32 v{k1}, s{sMASK}, v{HI+r}")
        A(f"  v_sub_f32 v{a0}, v{a0}, v{k0}")
        A(f"  v_sub_f32 v{a1}, v{a1}, v{k1}")
        A(f"  v_cvt_pk_bf16_f32 v{LO+r}, v{a0}, v{a1}")
    A(f"  ds_write2_b64 v{T3}, v[{HI}:{HI+1}], v[{HI+2}:{HI+3}] offset0:0 offset1:2")
    A(f"  ds_write2_b64 v{T3}, v[{LO}:{LO+1}], v[{LO+2}:{LO+3}] offset0:128 offset1:130")
    A("  s_waitcnt lgkmcnt(0)")
    for s in range(4):
        A(f"  ds_read_b128 v[{QS+4*s}:{QS+4*s+3}], v{T6} offset:{64*s}")
    for s in range(4):
        A(f"  ds_read_b128 v[{VP+4*s}:{VP+4*s+3}], v{T4} offset:{2048 + 64*s}")
    A("  s_waitcnt lgkmcnt(0)")
    for s in range(4):
        A(f"  v_mfma_f32_16x16x32_bf16 v[{S}:{S+3}], v[{VP+4*s}:{VP+4*s+3}], v[{QS+4*s}:{QS+4*s+3}], {'0' if s == 0 else f'v[{S}:{S+3}]'}")
    A("  s_nop 7")
    A(f"  v_add_f32_dpp v{CORR}, v{S}, v{S} row_ror:4 {DPPF}")
    if stamp:
        A("  s_memrealtime s[74:75]")
    A("  s_branch L_body")
    A("L_loop:")
    if stamp:
        A(f"  s_cmp_lg_u32 s{sIT}, 1")
        A("  s_cbranch_scc1 L_st1")
        A("  s_memrealtime s[76:77]")
        A("L_st1:")
    setoffs()
    def body(nl, last_copy):
        issued = [32 - nl]
        def wait(t, n):
            A(f"  s_waitcnt vmcnt({issued[0] - POS[(t, n)] - 1})")
        cnt = [0]
        def more():
            cnt[0] += 1
            if cnt[0] <= first: return
            for _ in range(per):
                if issued[0] < 32:
                    t, n = SEQ[issued[0]]
                    A(kload(n) if t == "k" else vload(n))
                    issued[0] += 1
        A(f"  v_add_u32 v{T0}, s{sS}, v{SADDR}")
        A(f"  ds_read_b128 v[{VS}:{VS+3}], v{T0}")
        A(f"  ds_read_b128 v[{VZ}:{VZ+3}], v{T0} offset:512")
        pend = []
        def kstep(T, s):
            a = KB + 4 * (8 * T + 2 * s)
            b = a + 4
            wait("k", 8 * T + 2 * s)
            for e in range(4):
                A(f"  v_cvt_f32_i32 v{a+e}, v{a+e}")
                if e == 1 and pend:
                    A(pend.pop(0))
            A(f"  v_cvt_pk_bf16_f32 v{a}, v{a}, v{a+1}")
            A(f"  v_cvt_pk_bf16_f32 v{a+1}, v{a+2}, v{a+3}")
            wait("k", 8 * T + 2 * s + 1)
            for e in range(4):
                A(f"  v_cvt_f32_i32 v{b+e}, v{b+e}")
            A(f"  v_cvt_pk_bf16_f32 v{a+2}, v{b}, v{b+1}")
            A(f"  v_cvt_pk_bf16_f32 v{a+3}, v{b+2}, v{b+3}")
            d = S + 4 * T
            pend.append(f"  v_mfma_f32_16x16x32_bf16 v[{d}:{d+3}], v[{a}:{a+3}], v[{QS+4*s}:{QS+4*s+3}], {'0' if s == 0 else f'v[{d}:{d+3}]'}")
            more()
        def vstep(dh, r):
            a = VB + 4 * (8 * dh + 2 * r)
            b = a + 4
            wait("v", 8 * dh + 2 * r)
            for e in range(4):
                A(f"  v_cvt_f32_i32 v{a+e}, v{a+e}")
                if e >= 1 and pend:
                    A(pend.pop(0))
            wait("v", 8 * dh + 2 * r + 1)
            for e in range(4):
                A(f"  v_cvt_f32_i32 v{b+e}, v{b+e}")
                if pend:
                    A(pend.pop(0))
            assert not pend
            for c in range(4):
                A(f"  v_cvt_pk_bf16_f32 v{VP+4*c+r}, v{a+c}, v{b+c}")
            more()
        def pv(dh):
            for c in range(4):
                ac = ACC + 16 * dh + 4 * c
                vp = VP + 4 * c
                pend.append(f"  v_mfma_f32_16x16x32_bf16 v[{ac}:{ac+3}], v[{PA}:{PA+3}], v[{vp}:{vp+3}], v[{ac}:{ac+3}]")
        def softmax():
            A(f"  s_waitcnt lgkmcnt(0)")
            A(f"  v_lshlrev_b32 v{VSF}, 16, v{VS}")
            A(pend.pop(0))
            assert not pend
            A(f"  v_and_b32 v{VSF+1}, s{sMASK}, v{VS}")
            for r in range(1, 4):
                A(f"  v_lshlrev_b32 v{VSF+2*r}, 16, v{VS+r}")
                A(f"  v_and_b32 v{VSF+2*r+1}, s{sMASK}, v{VS+r}")
            for j in range(8):
                A(f"  v_add_f32_dpp v{S+j}, v{S+j}, v{S+j} row_ror:4 {DPPF}")
            A(f"  v_max3_f32 v{T0}, v{S}, v{S+1}, v{S+2}")
            A(f"  v_max3_f32 v{T1}, v{S+3}, v{S+4}, v{S+5}")
            A(f"  v_max3_f32 v{T0}, v{T0}, v{S+6}, v{S+7}")
            A(f"  v_max_f32 v{T0}, v{T0}, v{T1}")
            A(f"  v_mov_b32 v{T1}, v{T0}")
            A("  s_nop 1")
            A(f"  v_permlane32_swap_b32 v{T1}, v{T0}")
            A(f"  v_max_f32 v{T0}, v{T0}, v{T1}")
            A(f"  v_mov_b32 v{T1}, v{T0}")
            A("  s_nop 1")
            A(f"  v_permlane16_swap_b32 v{T1}, v{T0}")
            A(f"  v_max_f32 v{T0}, v{T0}, v{T1}")
            A(f"  v_mul_f32 v{T0}, s{sC}, v{T0}")
            A(f"  v_max_f32 v{T0}, v{T0}, v{M}")
            A(f"  v_sub_f32 v{T1}, v{M}, v{T0}")
            A(f"  v_mov_b32 v{M}, v{T0}")
            A(f"  v_exp_f32 v{T1}, v{T1}")
            for j in range(8):
                A(f"  v_fma_f32 v{S+j}, v{S+j}, s{sC}, -v{M}")
            for j in range(8):
                A(f"  v_exp_f32 v{S+j}, v{S+j}")
            A(f"  v_mul_f32 v{LS}, v{LS}, v{T1}")
            A(f"  v_add_f32 v{T2}, v{S}, v{S+1}")
            A(f"  v_add_f32 v{T3}, v{S+2}, v{S+3}")
            A(f"  v_add_f32 v{T4}, v{S+4}, v{S+5}")
            A(f"  v_add_f32 v{T5}, v{S+6}, v{S+7}")
            for j in range(8):
                A(f"  v_mul_f32 v{S+j}, v{S+j}, v{VSF+j}")
            A(f"  v_add_f32 v{T2}, v{T2}, v{T3}")
            A(f"  v_add_f32 v{T4}, v{T4}, v{T5}")
            for j in range(8):
                A(f"  v_and_b32 v{VSF+j}, v{MLANE}, v{S+j}")
            A(f"  v_add_f32 v{LS}, v{LS}, v{T2}")
            for j in range(8):
                A(f"  v_sub_f32 v{S+j}, v{S+j}, v{VSF+j}")
            A(f"  v_add_f32 v{LS}, v{LS}, v{T4}")
            for r in range(4):
                A(f"  v_perm_b32 v{PA+r}, v{S+2*r+1}, v{S+2*r}, s{sPERM}")
            for r in range(36):
                i = r % 4
                A(f"  v_mul_f32_dpp v{ACC+r}, v{T1}, v{ACC+r} quad_perm:[{i},{i},{i},{i}] {DPPF}")
            A("  s_nop 1")
            A(f"  v_mfma_f32_16x16x32_bf16 v[{Z}:{Z+3}], v[{PA}:{PA+3}], v[{VZ}:{VZ+3}], v[{Z}:{Z+3}]")
        if order == 'kv':
            for T in range(2):
                for s_ in range(4): kstep(T, s_)
            assert issued[0] == 32
            if latemode == 'last2':
                A(f"  s_cmp_lg_u32 s{sIT}, {NIT-1}")
                A("  s_cbranch_scc1 L_sm")
                for t, n in SEQ[32 - late:]:
                    A(vload(n))
                A("L_sm:")
            softmax()
            if last_copy and early:
                A(f"  v_mov_b32 v{T1}, v{LS}")
                A(f"  v_fma_f32 v{M}, v{CORR}, -s{sC}, v{M}")
                A("  s_nop 0")
                A(f"  v_permlane32_swap_b32 v{T1}, v{LS}")
                A(f"  v_add_f32 v{LS}, v{LS}, v{T1}")
                A(f"  v_mov_b32 v{T1}, v{LS}")
                A("  s_nop 1")
                A(f"  v_permlane16_swap_b32 v{T1}, v{LS}")
                A(f"  v_add_f32 v{LS}, v{LS}, v{T1}")
                A("  s_mov_b64 exec, 15")
                A(f"  ds_write_b32 v{MLA}, v{M}")
                A(f"  ds_write_b32 v{MLA}, v{LS} offset:64")
                A("  s_mov_b64 exec, -1")
            for r in range(4): vstep(0, r)
            pv(0)
            for r in range(4):
                vstep(1, r)
                if last_copy and early and r in (1, 2):
                    for i in (2 * (r - 1), 2 * (r - 1) + 1):
                        for c in range(4):
                            A(f"  v_sub_f32 v{KB+4*i+c}, v{ACC+4*c+i}, v{Z+i}")
                        A(f"  ds_write_b128 v{WA}, v[{KB+4*i}:{KB+4*i+3}] offset:{512*i}")
            pv(1)
            if last_copy and early:
                A("  s_nop 1")
                for p in pend: A(p)
                return
        else:
            for s_ in range(4): kstep(0, s_)
            for r in range(4): vstep(0, r)
            assert issued[0] == 32
            for s_ in range(4): kstep(1, s_)
            softmax()
            pv(0)
            for r in range(4): vstep(1, r)
            pv(1)
        A(f"  s_add_u32 s{sIT}, s{sIT}, 1")
        A(f"  s_cmp_lg_u32 s{sIT}, {NIT}")
        for p in pend:
            A(p)
    if late and latemode == 'last':
        A(f"  s_cmp_ge_u32 s{sIT}, {NIT-nlate}")
        A("  s_cbranch_scc1 L_last")
        burst(0)
        A("L_body:")
        body(0, False)
        A("  s_branch L_loop")
        A("L_last:")
        burst(late)
        body(late, True)
        if nlate > 1:
            A("  s_cbranch_scc1 L_loop")
    elif latemode == 'last2':
        A(f"  s_cmp_eq_u32 s{sIT}, {NIT-1}")
        A("  s_cbranch_scc0 L_full")
        burst(late)
        A(f"  s_waitcnt vmcnt({16 - late})")
        A("  s_branch L_body")
        A("L_full:")
        burst(0)
        A("L_body:")
        body(0, False)
        A("  s_cbranch_scc1 L_loop")
    else:
        burst(late)
        A("L_body:")
        body(late, False)
        A("  s_cbranch_scc1 L_loop")
    if stamp:
        A("  s_memrealtime s[62:63]")
    TR = KB
    def touch():
        A("  s_mov_b64 exec, 1")
        if "w" in tlb: A(f"  buffer_load_dword v{T2}, v{DBGO}, {WSRD}, s{sREC} offen offset:3072 sc1")
        if "d" in tlb: A(f"  global_load_dword v{T3}, v{DBGO}, s[20:21] offset:128 sc1")
        if "o" in tlb: A(f"  global_load_dword v{T4}, v{OUTO}, s[18:19] sc1")
        A("  s_mov_b64 exec, -1")
    if tlb: touch()
    if early:
        A("  s_nop 7")
        for i in range(4):
            for c in range(4):
                A(f"  v_sub_f32 v{TR+16+4*i+c}, v{ACC+16+4*c+i}, v{Z+i}")
            t = TR + 16 + 4 * i
            A(f"  ds_write_b128 v{WA}, v[{t}:{t+3}] offset:{512*i + 256}")
        A("  s_waitcnt lgkmcnt(0)")
        A("  s_barrier")
    else:
        A(f"  v_mov_b32 v{T1}, v{LS}")
        A(f"  v_fma_f32 v{M}, v{CORR}, -s{sC}, v{M}")
        for i in range(4):
            for c in range(4):
                A(f"  v_sub_f32 v{TR+4*i+c}, v{ACC+4*c+i}, v{Z+i}")
            if i == 0:
                A(f"  v_permlane32_swap_b32 v{T1}, v{LS}")
                A(f"  v_add_f32 v{LS}, v{LS}, v{T1}")
                A(f"  v_mov_b32 v{T1}, v{LS}")
            if i == 1:
                A(f"  v_permlane16_swap_b32 v{T1}, v{LS}")
                A(f"  v_add_f32 v{LS}, v{LS}, v{T1}")
        A("  s_mov_b64 exec, 15")
        A(f"  ds_write_b32 v{MLA}, v{M}")
        A(f"  ds_write_b32 v{MLA}, v{LS} offset:64")
        A("  s_mov_b32 exec_lo, -1")
        for i in range(4):
            t = TR + 4 * i
            A(f"  ds_write_b128 v{WA}, v[{t}:{t+3}] offset:{512*i}")
        for i in range(4):
            for c in range(4):
                A(f"  v_sub_f32 v{TR+16+4*i+c}, v{ACC+16+4*c+i}, v{Z+i}")
            t = TR + 16 + 4 * i
            A(f"  ds_write_b128 v{WA}, v[{t}:{t+3}] offset:{512*i + 256}")
        A("  s_mov_b64 exec, -1")
        A("  s_waitcnt lgkmcnt(0)")
        A("  s_barrier")
    E = []
    B = E.append
    MW, LW, DAT, O, U = VP, VP + 4, VB, S, S + 4
    B(f"  ds_read_b128 v[{MW}:{MW+3}], v{MA} offset:16384")
    B(f"  ds_read_b128 v[{LW}:{LW+3}], v{MA} offset:16448")
    for w in range(4):
        t = DAT + 4 * w
        B(f"  ds_read_b128 v[{t}:{t+3}], v{RA} offset:{4096*w}")
    B("  s_waitcnt lgkmcnt(4)")
    B(f"  v_max3_f32 v{T0}, v{MW}, v{MW+1}, v{MW+2}")
    B(f"  v_max_f32 v{T0}, v{T0}, v{MW+3}")
    for w in range(4):
        B(f"  v_sub_f32 v{MW+w}, v{MW+w}, v{T0}")
    for w in range(4):
        B(f"  v_exp_f32 v{MW+w}, v{MW+w}")
    B("  s_waitcnt lgkmcnt(0)")
    for e in range(4):
        B(f"  v_mul_f32 v{O+e}, v{MW}, v{DAT+e}")
    B(f"  v_mul_f32 v{T1}, v{MW}, v{LW}")
    for w in range(1, 4):
        for e in range(4):
            B(f"  v_fmac_f32 v{O+e}, v{MW+w}, v{DAT+4*w+e}")
        B(f"  v_fmac_f32 v{T1}, v{MW+w}, v{LW+w}")
    for e in range(4):
        B(f"  v_mov_b32 v{U+e}, v{O+e}")
    B("  s_nop 0")
    for e in range(4):
        B(f"  v_permlane32_swap_b32 v{U+e}, v{O+e}")
    for e in range(4):
        B(f"  v_add_f32 v{O+e}, v{O+e}, v{U+e}")
    B("  s_mov_b32 exec_lo, 0")
    B(f"  v_mov_b32 v{O}, v{T0}")
    B(f"  v_mov_b32 v{O+1}, v{T1}")
    if padref: B(f"  v_mov_b32 v{O+2}, s60")
    B("  s_mov_b32 exec_lo, -1")
    B("  s_mov_b32 exec_hi, 1")
    B(f"  buffer_store_dwordx4 v[{O}:{O+3}], v{PUB}, {WSRD}, s{sREC} offen {pubf}")
    B(f"  s_cmp_lg_u32 s{sW}, 0")
    B("  s_waitcnt vmcnt(0)")
    B("  s_barrier")
    pfi = f"  buffer_load_dwordx4 v[{DAT}:{DAT+3}], v{PUB}, {WSRD}, s{sREC} offen {pf}"
    B("  s_cbranch_scc1 L_wait0")
    B("  s_mov_b64 exec, 1")
    B(f"  global_atomic_add v{CNT}, v{DBGO}, v{ONE}, s[20:21] sc0 sc1")
    if pf is not None:
        B("  s_mov_b32 exec_lo, -1")
        B("  s_mov_b32 exec_hi, 1")
        B(pfi)
        B("  s_mov_b64 exec, 1")
        B("  s_waitcnt vmcnt(1)")
    else:
        B("  s_waitcnt vmcnt(0)")
    B(f"  ds_write_b32 v{FLG}, v{CNT}")
    B("  s_waitcnt lgkmcnt(0)")
    B("  s_branch L_wait")
    B("L_wait0:")
    if pf is not None:
        B(pfi)
    B("L_wait:")
    B("  s_mov_b64 exec, -1")
    B("  s_barrier")
    B(f"  ds_read_b32 v{CNT}, v{FLG}")
    B("  s_waitcnt lgkmcnt(0)")
    B(f"  v_readfirstlane_b32 s{sT}, v{CNT}")
    B(f"  s_cmp_lg_u32 s{sT}, 31")
    B("  s_cbranch_scc1 L_done")
    F = S
    for _ in range(dly_tail): B("  s_sleep 37")
    if padref:
        B(f"  buffer_load_dwordx4 v[{F}:{F+3}], v{MLO}, {WSRD}, s{sHB} offen sc1")
    else:
        B(f"  buffer_load_dwordx2 v[{F}:{F+1}], v{MLO}, {WSRD}, s{sHB} offen sc1")
    if not split: n1 = 16
    def dl(k):
        bb = KB + 4 * k
        B(f"  buffer_load_dwordx4 v[{bb}:{bb+3}], v{POL}, {WSRD}, s{sHB} offen sc1")
        if k < 15:
            B(f"  s_add_u32 s{sHB}, s{sHB}, 4096")
    for k in range(n1): dl(k)
    for e in range(4):
        B(f"  v_mov_b32 v{PA+e}, 0")
    B(f"  s_waitcnt vmcnt({n1})")
    for k in range(n1, 16): dl(k)
    B(f"  v_max_f32_dpp v{T0}, v{F}, v{F} row_ror:8 {DPPF}")
    for sh in (4, 2, 1):
        B("  s_nop 1")
        B(f"  v_max_f32_dpp v{T0}, v{T0}, v{T0} row_ror:{sh} {DPPF}")
    B(f"  v_mov_b32 v{T1}, v{T0}")
    B("  s_nop 1")
    B(f"  v_permlane32_swap_b32 v{T1}, v{T0}")
    B(f"  v_max_f32 v{T0}, v{T0}, v{T1}")
    B(f"  v_sub_f32 v{F}, v{F}, v{T0}")
    B(f"  v_exp_f32 v{F}, v{F}")
    B("  s_nop 0")
    B(f"  v_mul_f32 v{T0}, v{F}, v{F+1}")
    red = [f"  v_add_f32_dpp v{T0}, v{T0}, v{T0} row_ror:{sh} {DPPF}" for sh in (8, 4, 2, 1)]
    red += [f"  v_mov_b32 v{T1}, v{T0}", f"  v_permlane32_swap_b32 v{T1}, v{T0}", f"  v_add_f32 v{T0}, v{T0}, v{T1}", f"  v_rcp_f32 v{T0}, v{T0}"]
    for k in range(16):
        bb = KB + 4 * k
        B(f"  s_waitcnt vmcnt({15-k})")
        for e in range(4):
            B(f"  v_fmac_f32_dpp v{PA+e}, v{F}, v{bb+e} row_newbcast:{k} {DPPF}")
        if red:
            B(red.pop(0))
    for e in range(4):
        B(f"  v_mov_b32 v{VS+e}, v{PA+e}")
    B("  s_nop 0")
    for e in range(4):
        B(f"  v_permlane32_swap_b32 v{VS+e}, v{PA+e}")
    for e in range(4):
        B(f"  v_add_f32 v{PA+e}, v{PA+e}, v{VS+e}")
    for e in range(4):
        B(f"  v_mul_f32 v{PA+e}, v{PA+e}, v{T0}")
    B(f"  v_cvt_pk_bf16_f32 v{PA}, v{PA}, v{PA+1}")
    B(f"  v_cvt_pk_bf16_f32 v{PA+1}, v{PA+2}, v{PA+3}")
    if padref:
        op = "v_min_u32" if padref == "min" else "v_max_u32"
        for sh in (8, 4, 2, 1):
            B("  s_nop 1")
            B(f"  {op}_dpp v{F+2}, v{F+2}, v{F+2} row_ror:{sh} {DPPF}")
        B("  s_nop 1")
        B(f"  v_readlane_b32 s60, v{F+2}, 0")
        B(f"  v_readlane_b32 s61, v{F+2}, 32")
        B("  s_nop 3")
        B(f"  s_{padref}_u32 s60, s60, s61")
    if padto:
        B("L_pad:")
        B("  s_memrealtime s[62:63]")
        B("  s_waitcnt lgkmcnt(0)")
        B("  s_sub_u32 s62, s62, s60")
        B(f"  s_cmp_lt_u32 s62, {padto*100}")
        B("  s_cbranch_scc1 L_pad")
    B("  s_mov_b32 exec_hi, 0")
    B(f"  global_store_dwordx2 v{OUTO}, v[{PA}:{PA+1}], s[18:19] {outsc}")
    if warm:
        def size(ins):
            t = ins.split()
            if ins.endswith(":"): return 0
            op = t[0]
            if op.startswith(("ds_", "buffer_", "global_", "v_max3", "v_cvt_pk", "v_mfma", "v_fma_", "v_perm_b32", "v_lshl_add", "v_bfi", "v_readlane", "v_writelane")) or "dpp" in op: return 8
            if op == "s_add_u32" and t[-1] == "4096": return 8
            return 4
        n = 0
        acc = 0
        A("L_isl0:")
        A("  s_cbranch_execz L_isl1")
        for ins in E:
            sz = size(ins)
            if acc + sz > warm - 4:
                n += 1
                A(f"L_isl{n}:")
                A(f"  s_cbranch_execz L_isl{n+1}")
                acc = 0
            A(ins)
            acc += sz
        n += 1
        A(f"L_isl{n}:")
        A("  s_cbranch_execz L_warmback")
    else:
        L.extend(E)
    A("L_done:")
    if stamp:
        A("  s_mov_b64 exec, -1")
        A("  s_waitcnt vmcnt(0)")
        A("  s_memrealtime s[64:65]")
        A("  s_getreg_b32 s66, hwreg(HW_REG_XCC_ID)")
        A("  s_waitcnt lgkmcnt(0)")
        A("  v_mov_b32 v16, s60"); A("  v_mov_b32 v17, s64"); A("  v_mov_b32 v18, s66"); A("  v_mov_b32 v19, s62")
        A(f"  s_lshl_b32 s{sT}, s2, 2")
        A(f"  s_add_u32 s{sT}, s{sT}, s{sW}")
        A(f"  s_lshl_b32 s{sT}, s{sT}, 5")
        A(f"  s_add_u32 s{sT}, s{sT}, {536870912 - 262144}")
        A(f"  v_mov_b32 v1, s{sT}")
        A("  v_mov_b32 v20, s72"); A("  v_mov_b32 v21, s74"); A("  v_mov_b32 v22, s76"); A("  v_mov_b32 v23, s76")
        A("  s_mov_b64 exec, 1")
        A("  global_store_dwordx4 v1, v[16:19], s[22:23]")
        A("  global_store_dwordx4 v1, v[20:23], s[22:23] offset:16")
    A("L_end:")
    A("  s_endpgm")
    A('.section .rodata,"a"'); A(".p2align 6")
    A(f".amdhsa_kernel {NAME}_kernel")
    A(f"  .amdhsa_next_free_vgpr 256"); A("  .amdhsa_next_free_sgpr 80"); A(f"  .amdhsa_accum_offset 256")
    A("  .amdhsa_group_segment_fixed_size 0"); A("  .amdhsa_kernarg_size 80"); A("  .amdhsa_user_sgpr_count 2")
    A("  .amdhsa_user_sgpr_kernarg_segment_ptr 1"); A("  .amdhsa_system_sgpr_workgroup_id_x 1")
    A(".end_amdhsa_kernel")
    return "\n".join(L) + "\n"

if __name__ == "__main__":
    out = sys.argv[1]
    kw = eval("dict(" + (sys.argv[2] if len(sys.argv) > 2 else "") + ")")
    open(out, "w").write(gen(**kw))
```

```python
import sys, math, struct
NAME = "standalone__kv_cache_quant_int4_int2_kv_with_per_channel_or_per_token_scales__decode"
HEADER = open("cdna_kernels/" + NAME + ".s.ref").read().split("; Override launch geometry")[0]

def f32bits(x):
    return struct.unpack("<I", struct.pack("<f", x))[0]

DOC = """;
"""

def gen0(stamp=False, padA=0, padB=0, padL=0, padM=0, e64=0):
    NWG, NIT, ITPOS = 256, 8, 4
    L = []
    A = L.append
    LDS = 16640 + 4096
    A(HEADER.rstrip("\n"))
    A(DOC.rstrip("\n"))
    A(f"; @launch grid=({NWG},1,1) block=(256,1,1) lds={LDS}")
    A('.amdgcn_target "amdgcn-amd-amdhsa--gfx950"')
    A(".text")
    A(f".globl {NAME}_kernel")
    A(".p2align 8")
    A(f".type {NAME}_kernel,@function")
    A(f"{NAME}_kernel:")
    LANE, KOFF, VOFF, G16, MLANE, M, LS, CORR = 1, 2, 3, 4, 5, 6, 7, 8
    T0, T1, T2, T3, T4, T5, T6 = 9, 10, 11, 12, 13, 14, 15
    QS = 16; ACC = 32; Z = 64; S = 68; PA = 76; VS = 80; VZ = 84; VSF = 88; VP = 96
    SADDR, PUB, POL, WA, RA, MLA, MA, MLO, OUTO, FLG, DBGO, ONE, CNT = range(112, 125)
    KB = 128
    VB = 192
    sW, sH, sI, sJ, sKV, sS, sIT, sT = 24, 25, 26, 27, 28, 29, 30, 31
    sKV2, sC, sPERM, sMASK, sBASE, sREC, sT2, sHB = 44, 45, 46, 47, 48, 49, 50, 51
    KSRD, VSRD, WSRD = "s[32:35]", "s[36:39]", "s[40:43]"
    C = math.log2(math.e) / math.sqrt(128.0)
    DPPF = "row_mask:0xf bank_mask:0xf"

    A(f"  s_cmp_ge_u32 s2, {NWG}")
    A("  s_cbranch_scc1 L_end")
    A("  s_load_dwordx16 s[4:19], s[0:1], 0")
    A("  s_load_dwordx4 s[20:23], s[0:1], 64")
    if stamp:
        A("  s_memrealtime s[60:61]")
    A(f"  v_lshrrev_b32 v{T0}, 6, v0")
    A(f"  v_and_b32 v{LANE}, 63, v0")
    A(f"  v_readfirstlane_b32 s{sW}, v{T0}             ; wave")
    A(f"  v_and_b32 v{T1}, 15, v{LANE}")
    A(f"  v_lshrrev_b32 v{T2}, 4, v{LANE}")
    A(f"  s_and_b32 s{sH}, s2, 7")
    A(f"  s_lshr_b32 s{sI}, s2, 3")
    A(f"  v_lshlrev_b32 v{G16}, 4, v{T2}")
    A(f"  v_lshl_add_u32 v{KOFF}, v{T1}, 9, v{G16}")
    A(f"  v_lshlrev_b32 v{T3}, 4, v{T1}")
    A(f"  v_lshl_add_u32 v{VOFF}, v{T2}, 11, v{T3}")
    A(f"  s_lshl_b32 s{sJ}, s{sW}, 5")
    A(f"  s_add_u32 s{sJ}, s{sJ}, s{sI}")
    A(f"  s_and_b32 s{sT}, s{sJ}, {(1 << ITPOS) - 1}")
    A(f"  s_lshr_b32 s{sT2}, s{sJ}, {ITPOS}")
    A(f"  s_lshl_b32 s{sT2}, s{sT2}, {ITPOS + 3}")
    A(f"  s_or_b32 s{sT}, s{sT}, s{sT2}")
    A(f"  s_lshl_b32 s{sBASE}, s{sT}, 14")
    A(f"  s_lshl_b32 s{sT}, s{sH}, 24")
    A(f"  s_add_u32 s{sBASE}, s{sBASE}, s{sT}")
    A(f"  s_mov_b32 s{sIT}, 0")
    A(f"  s_lshl_b32 s{sT}, s{sH}, 10")
    A(f"  v_lshl_add_u32 v{T5}, v{LANE}, 4, s{sT}       ; q offset")
    A(f"  s_lshl_b32 s{sT}, s{sH}, 9")
    A(f"  s_lshr_b32 s{sT2}, s{sW}, 1")
    A(f"  s_lshl_b32 s{sT2}, s{sT2}, 8")
    A(f"  s_add_u32 s{sT}, s{sT}, s{sT2}")
    A(f"  v_add_u32 v{T6}, s{sT}, v{T3}")
    A(f"  s_lshr_b32 s{sT}, s{sBASE}, 8")
    A(f"  v_and_b32 v{T4}, 7, v{LANE}")
    A(f"  v_lshl_add_u32 v{T4}, v{T4}, 3, s{sT}")
    A(f"  v_lshrrev_b32 v{T0}, 3, v{LANE}")
    A(f"  v_lshl_add_u32 v{T4}, v{T0}, {6 + ITPOS}, v{T4}")
    def setoffs():
        A(f"  s_add_u32 s{sT}, s{sIT}, s{sH}")
        A(f"  s_and_b32 s{sT}, s{sT}, 7")
        A(f"  s_lshl_b32 s{sS}, s{sT}, 6")
        A(f"  s_lshl_b32 s{sT}, s{sT}, {14 + ITPOS}")
        A(f"  s_add_u32 s{sKV}, s{sT}, s{sBASE}")
        A(f"  s_add_u32 s{sKV2}, s{sKV}, 8192")
    setoffs()
    A("  s_mov_b32 s34, 0x8000000"); A("  s_mov_b32 s35, 0x20000")
    A("  s_mov_b32 s38, 0x8000000"); A("  s_mov_b32 s39, 0x20000")
    A("  s_mov_b32 s42, 0x100000"); A("  s_mov_b32 s43, 0x20000")
    A("  s_waitcnt lgkmcnt(0)")
    A("  s_mov_b32 s32, s6"); A("  s_mov_b32 s33, s7")
    A("  s_mov_b32 s36, s8"); A("  s_mov_b32 s37, s9")
    A("  s_mov_b32 s40, s22"); A("  s_mov_b32 s41, s23")
    Q0, KS, KZ, PVS, PVZ = S, S + 4, PA, VS, VS + 2
    A(f"  global_load_dwordx4 v[{Q0}:{Q0+3}], v{T5}, s[4:5]")
    A(f"  global_load_dwordx4 v[{KS}:{KS+3}], v{T6}, s[10:11]")
    A(f"  global_load_dwordx4 v[{KZ}:{KZ+3}], v{T6}, s[12:13]")
    A(f"  global_load_dwordx2 v[{PVS}:{PVS+1}], v{T4}, s[14:15] nt")
    A(f"  global_load_dwordx2 v[{PVZ}:{PVZ+1}], v{T4}, s[16:17] nt")
    def kload(n):
        T, i = n // 8, n % 8
        b = KB + 4 * n
        return f"  buffer_load_dwordx4 v[{b}:{b+3}], v{KOFF}, {KSRD}, s{sKV2 if T else sKV} offen offset:{64*i} nt"
    def vload(n):
        dh, j = n // 8, n % 8
        b = VB + 4 * n
        return f"  buffer_load_dwordx4 v[{b}:{b+3}], v{VOFF}, {VSRD}, s{sKV2 if j >= 4 else sKV} offen offset:{512*(j&3) + 256*dh} nt"
    def kburst():
        for n in range(16): A(kload(n))
    def vburst():
        for n in range(16): A(vload(n))
    kburst(); vburst()
    if stamp:
        A("  s_memrealtime s[72:73]")
    A(f"  s_mov_b32 s{sC}, {f32bits(C):#x}")
    A(f"  s_mov_b32 s{sPERM}, 0x07060302")
    A(f"  s_mov_b32 s{sMASK}, 0xffff0000")
    A(f"  s_lshl_b32 s{sREC}, s{sH}, 5")
    A(f"  v_mov_b32 v{DBGO}, s{sREC}")
    A(f"  s_add_u32 s{sREC}, s{sREC}, s{sI}")
    A(f"  s_lshl_b32 s{sREC}, s{sREC}, 12")
    A(f"  s_lshl_b32 s{sHB}, s{sH}, 17")
    A(f"  s_lshl_b32 s{sT2}, s{sW}, 12")
    A(f"  v_bfe_i32 v{MLANE}, v{LANE}, 2, 1")
    A(f"  v_and_b32 v{MLANE}, s{sMASK}, v{MLANE}")
    A(f"  v_mov_b32 v{M}, 0xff800000")
    A(f"  v_mov_b32 v{LS}, 0")
    A(f"  v_mov_b32 v{ONE}, 1")
    A(f"  v_mov_b32 v{FLG}, 16512")
    for r in range(36):
        A(f"  v_mov_b32 v{ACC+r}, 0")
    A(f"  v_and_b32 v{WA}, 16, v{G16}")
    A(f"  v_lshl_add_u32 v{WA}, v{WA}, 7, v{T3}")
    A(f"  v_add_u32 v{WA}, s{sT2}, v{WA}")
    A(f"  s_lshl_b32 s{sT}, s{sW}, 2")
    A(f"  s_add_u32 s{sT}, s{sT}, 16384")
    A(f"  v_lshl_add_u32 v{MLA}, v{LANE}, 4, s{sT}")
    A(f"  v_and_b32 v{T0}, 31, v{LANE}")
    A(f"  v_lshrrev_b32 v{T2}, 5, v{LANE}")
    A(f"  s_lshl_b32 s{sT}, s{sW}, 9")
    A(f"  v_lshl_add_u32 v{PUB}, v{T0}, 4, s{sT}")
    A(f"  v_lshl_add_u32 v{RA}, v{T2}, 11, v{PUB}")
    A(f"  v_lshl_add_u32 v{POL}, v{T2}, 16, v{PUB}")
    A(f"  s_lshl_b32 s{sT}, s{sW}, 4")
    A(f"  v_mov_b32 v{MA}, s{sT}")
    A(f"  s_add_u32 s{sT}, s{sT}, 2048")
    A(f"  v_writelane_b32 v{PUB}, s{sT}, 32")
    A(f"  v_lshl_add_u32 v{T1}, v{T2}, 4, v{T1}")
    A(f"  v_lshl_add_u32 v{MLO}, v{T1}, 12, s{sT}")
    A(f"  s_lshl_b32 s{sT}, s{sH}, 2")
    A(f"  s_add_u32 s{sT}, s{sT}, s{sW}")
    A(f"  s_lshl_b32 s{sT}, s{sT}, 8")
    A(f"  v_lshl_add_u32 v{OUTO}, v{LANE}, 3, s{sT}")
    A(f"  v_bfe_u32 v{T0}, v{LANE}, 2, 2")
    A(f"  v_lshl_add_u32 v{T3}, v{T0}, 6, s{sT2}")
    A(f"  v_bfe_u32 v{T0}, v{LANE}, 1, 1")
    A(f"  v_lshl_add_u32 v{T3}, v{T0}, 3, v{T3}")
    A(f"  v_and_b32 v{T0}, 1, v{LANE}")
    A(f"  v_lshl_add_u32 v{T3}, v{T0}, 5, v{T3}")
    A(f"  v_add_u32 v{T5}, 2048, v{T3}")
    A(f"  v_lshl_add_u32 v{T3}, v{G16}, 4, v{T3}")
    A(f"  v_add_u32 v{T4}, s{sT2}, v{G16}")
    A(f"  v_and_b32 v{T0}, 7, v{LANE}")
    A(f"  v_lshl_add_u32 v{T6}, v{T0}, 8, v{T4}")
    A(f"  s_lshl_b32 s{sT}, s{sW}, 10")
    A(f"  s_add_u32 s{sT}, s{sT}, 16640")
    A(f"  v_lshl_add_u32 v{T1}, v{LANE}, 3, s{sT}")
    A(f"  v_lshrrev_b32 v{SADDR}, 1, v{G16}")
    A(f"  v_add_u32 v{SADDR}, s{sT}, v{SADDR}")
    A(f"  s_waitcnt vmcnt(32)")
    A(f"  ds_write_b64 v{T1}, v[{PVS}:{PVS+1}]")
    A(f"  ds_write_b64 v{T1}, v[{PVZ}:{PVZ+1}] offset:512")
    A(f"  ds_write2_b64 v{T5}, v[{KZ}:{KZ+1}], v[{KZ+2}:{KZ+3}] offset0:0 offset1:2")
    HI, LO, TA = VP, VP + 4, VP + 8
    for r in range(4):
        a0, a1, k0, k1 = TA, TA + 1, TA + 2, TA + 3
        A(f"  v_lshlrev_b32 v{a0}, 16, v{Q0+r}")
        A(f"  v_and_b32 v{a1}, s{sMASK}, v{Q0+r}")
        A(f"  v_lshlrev_b32 v{k0}, 16, v{KS+r}")
        A(f"  v_and_b32 v{k1}, s{sMASK}, v{KS+r}")
        A(f"  v_mul_f32 v{a0}, v{a0}, v{k0}")
        A(f"  v_mul_f32 v{a1}, v{a1}, v{k1}")
        A(f"  v_cvt_pk_bf16_f32 v{HI+r}, v{a0}, v{a1}")
        A(f"  v_lshlrev_b32 v{k0}, 16, v{HI+r}")
        A(f"  v_and_b32 v{k1}, s{sMASK}, v{HI+r}")
        A(f"  v_sub_f32 v{a0}, v{a0}, v{k0}")
        A(f"  v_sub_f32 v{a1}, v{a1}, v{k1}")
        A(f"  v_cvt_pk_bf16_f32 v{LO+r}, v{a0}, v{a1}")
    A(f"  ds_write2_b64 v{T3}, v[{HI}:{HI+1}], v[{HI+2}:{HI+3}] offset0:0 offset1:2")
    A(f"  ds_write2_b64 v{T3}, v[{LO}:{LO+1}], v[{LO+2}:{LO+3}] offset0:128 offset1:130")
    A("  s_waitcnt lgkmcnt(0)")
    for s in range(4):
        A(f"  ds_read_b128 v[{QS+4*s}:{QS+4*s+3}], v{T6} offset:{64*s}")
    for s in range(4):
        A(f"  ds_read_b128 v[{VP+4*s}:{VP+4*s+3}], v{T4} offset:{2048 + 64*s}")
    A("  s_waitcnt lgkmcnt(0)")
    for s in range(4):
        A(f"  v_mfma_f32_16x16x32_bf16 v[{S}:{S+3}], v[{VP+4*s}:{VP+4*s+3}], v[{QS+4*s}:{QS+4*s+3}], {'0' if s == 0 else f'v[{S}:{S+3}]'}")
    A("  s_nop 7")
    A(f"  v_add_f32_dpp v{CORR}, v{S}, v{S} row_ror:4 {DPPF}")
    if stamp:
        A("  s_memrealtime s[74:75]")
    A("  s_branch L_body")
    for _ in range(padL): A("  s_nop 0")

    def body(last):
        issued = [16 if last else 32]
        def wait(pos):
            A(f"  s_waitcnt vmcnt({issued[0] - pos - 1})")
        A(f"  v_add_u32 v{T0}, s{sS}, v{SADDR}")
        A(f"  ds_read2_b64 v[{VS}:{VS+3}], v{T0} offset0:0 offset1:4")
        A(f"  ds_read2_b64 v[{VZ}:{VZ+3}], v{T0} offset0:64 offset1:68")
        pend = []
        for T in range(2):
            for s in range(4):
                a = KB + 4 * (8 * T + 2 * s)
                b = a + 4
                wait(8 * T + 2 * s)
                for e in range(4):
                    A(f"  v_cvt_f32_i32 v{a+e}, v{a+e}")
                    if e == 1 and pend:
                        A(pend.pop(0))
                A(f"  v_cvt_pk_bf16_f32 v{a}, v{a}, v{a+1}")
                A(f"  v_cvt_pk_bf16_f32 v{a+1}, v{a+2}, v{a+3}")
                wait(8 * T + 2 * s + 1)
                for e in range(4):
                    A(f"  v_cvt_f32_i32 v{b+e}, v{b+e}")
                A(f"  v_cvt_pk_bf16_f32 v{a+2}, v{b}, v{b+1}")
                A(f"  v_cvt_pk_bf16_f32 v{a+3}, v{b+2}, v{b+3}")
                d = S + 4 * T
                pend.append(f"  v_mfma_f32_16x16x32_bf16 v[{d}:{d+3}], v[{a}:{a+3}], v[{QS+4*s}:{QS+4*s+3}], {'0' if s == 0 else f'v[{d}:{d+3}]'}")
        if last:
            vburst()
            issued[0] = 32
            for _ in range(padA): A("  s_nop 0")
        A(f"  s_waitcnt lgkmcnt(0)")
        A(f"  v_lshlrev_b32 v{VSF}, 16, v{VS}")
        A(pend.pop(0))
        A(f"  v_and_b32 v{VSF+1}, s{sMASK}, v{VS}")
        for r in range(1, 4):
            A(f"  v_lshlrev_b32 v{VSF+2*r}, 16, v{VS+r}")
            A(f"  v_and_b32 v{VSF+2*r+1}, s{sMASK}, v{VS+r}")
        for j in range(8):
            A(f"  v_add_f32_dpp v{S+j}, v{S+j}, v{S+j} row_ror:4 {DPPF}")
        A(f"  v_max3_f32 v{T0}, v{S}, v{S+1}, v{S+2}")
        A(f"  v_max3_f32 v{T1}, v{S+3}, v{S+4}, v{S+5}")
        A(f"  v_max3_f32 v{T0}, v{T0}, v{S+6}, v{S+7}")
        A(f"  v_max_f32 v{T0}, v{T0}, v{T1}")
        A(f"  v_mov_b32 v{T1}, v{T0}")
        A("  s_nop 1")
        A(f"  v_permlane32_swap_b32 v{T1}, v{T0}")
        A(f"  v_max_f32 v{T0}, v{T0}, v{T1}")
        A(f"  v_mov_b32 v{T1}, v{T0}")
        A("  s_nop 1")
        A(f"  v_permlane16_swap_b32 v{T1}, v{T0}")
        A(f"  v_max_f32 v{T0}, v{T0}, v{T1}")
        A(f"  v_mul_f32 v{T0}, s{sC}, v{T0}")
        A(f"  v_max_f32 v{T0}, v{T0}, v{M}")
        A(f"  v_sub_f32 v{T1}, v{M}, v{T0}")
        A(f"  v_mov_b32 v{M}, v{T0}")
        A(f"  v_exp_f32 v{T1}, v{T1}")
        for j in range(8):
            A(f"  v_fma_f32 v{S+j}, v{S+j}, s{sC}, -v{M}")
        for j in range(8):
            A(f"  v_exp_f32 v{S+j}, v{S+j}")
        A(f"  v_mul_f32 v{LS}, v{LS}, v{T1}")
        A(f"  v_add_f32 v{T2}, v{S}, v{S+1}")
        A(f"  v_add_f32 v{T3}, v{S+2}, v{S+3}")
        A(f"  v_add_f32 v{T4}, v{S+4}, v{S+5}")
        A(f"  v_add_f32 v{T5}, v{S+6}, v{S+7}")
        for j in range(8):
            A(f"  v_mul_f32 v{S+j}, v{S+j}, v{VSF+j}")
        A(f"  v_add_f32 v{T2}, v{T2}, v{T3}")
        A(f"  v_add_f32 v{T4}, v{T4}, v{T5}")
        for j in range(8):
            A(f"  v_and_b32 v{VSF+j}, v{MLANE}, v{S+j}")
        A(f"  v_add_f32 v{LS}, v{LS}, v{T2}")
        for j in range(8):
            A(f"  v_sub_f32 v{S+j}, v{S+j}, v{VSF+j}")
        A(f"  v_add_f32 v{LS}, v{LS}, v{T4}")
        for r in range(4):
            A(f"  v_perm_b32 v{PA+r}, v{S+2*r+1}, v{S+2*r}, s{sPERM}")
        for r in range(36):
            i = r % 4
            A(f"  v_mul_f32_dpp v{ACC+r}, v{T1}, v{ACC+r} quad_perm:[{i},{i},{i},{i}] {DPPF}")
        A("  s_nop 1")
        A(f"  v_mfma_f32_16x16x32_bf16 v[{Z}:{Z+3}], v[{PA}:{PA+3}], v[{VZ}:{VZ+3}], v[{Z}:{Z+3}]")
        if last:
            A("  ; m and l are final: hand them to LDS while V is still in flight")
            A(f"  v_mov_b32 v{T1}, v{LS}")
            A(f"  v_fma_f32 v{M}, v{CORR}, -s{sC}, v{M}")
            A("  s_nop 0")
            A(f"  v_permlane32_swap_b32 v{T1}, v{LS}")
            A(f"  v_add_f32 v{LS}, v{LS}, v{T1}")
            A(f"  v_mov_b32 v{T1}, v{LS}")
            A("  s_nop 1")
            A(f"  v_permlane16_swap_b32 v{T1}, v{LS}")
            A(f"  v_add_f32 v{LS}, v{LS}, v{T1}")
            A("  s_mov_b64 exec, 15")
            A(f"  ds_write_b32 v{MLA}, v{M}")
            A(f"  ds_write_b32 v{MLA}, v{LS} offset:64")
            A("  s_mov_b64 exec, -1")
        for dh in range(2):
            for r in range(4):
                a = VB + 4 * (8 * dh + 2 * r)
                b = a + 4
                wait(16 + 8 * dh + 2 * r)
                for e in range(4):
                    A(f"  v_cvt_f32_i32 v{a+e}, v{a+e}")
                    if e >= 1 and pend:
                        A(pend.pop(0))
                wait(16 + 8 * dh + 2 * r + 1)
                for e in range(4):
                    A(f"  v_cvt_f32_i32 v{b+e}, v{b+e}")
                    if pend:
                        A(pend.pop(0))
                assert not pend
                for c in range(4):
                    A(f"  v_cvt_pk_bf16_f32 v{VP+4*c+r}, v{a+c}, v{b+c}")
                if last and dh == 1 and r in (1, 2):
                    for i in (2 * (r - 1), 2 * (r - 1) + 1):
                        for c in range(4):
                            A(f"  v_sub_f32 v{KB+4*i+c}, v{ACC+4*c+i}, v{Z+i}")
                        A(f"  ds_write_b128 v{WA}, v[{KB+4*i}:{KB+4*i+3}] offset:{512*i}")
            for c in range(4):
                ac = ACC + 16 * dh + 4 * c
                vp = VP + 4 * c
                pend.append(f"  v_mfma_f32_16x16x32_bf16 v[{ac}:{ac+3}], v[{PA}:{PA+3}], v[{vp}:{vp+3}], v[{ac}:{ac+3}]")
        if not last:
            A(f"  s_add_u32 s{sIT}, s{sIT}, 1")
        for p in pend:
            A(p)

    A("  ; ---------------- chunks 0..6 ----------------")
    A("L_loop:")
    kburst(); vburst()
    A("L_body:")
    body(False)
    if stamp:
        A(f"  s_cmp_lg_u32 s{sIT}, 1")
        A("  s_cbranch_scc1 L_st1")
        A("  s_memrealtime s[76:77]")
        A("L_st1:")
    setoffs()
    A(f"  s_cmp_lt_u32 s{sIT}, {NIT-1}")
    A("  s_cbranch_scc1 L_loop")
    kburst()
    for _ in range(padM): A("  s_nop 0")
    A("L_lastbody:")
    body(True)
    if stamp:
        A("  s_memrealtime s[62:63]")
    A("  s_nop 4")
    TR = KB + 16
    for i in range(4):
        for c in range(4):
            A(f"  v_sub_f32 v{TR+4*i+c}, v{ACC+16+4*c+i}, v{Z+i}")
        A(f"  ds_write_b128 v{WA}, v[{TR+4*i}:{TR+4*i+3}] offset:{512*i + 256}")
    A("  s_waitcnt lgkmcnt(0)")
    A("  s_barrier")
    A("L_merge:")
    MW, LW, DAT, O, U = VP, VP + 4, VB, S, S + 4
    A(f"  ds_read_b128 v[{MW}:{MW+3}], v{MA} offset:16384")
    A(f"  ds_read_b128 v[{LW}:{LW+3}], v{MA} offset:16448")
    for w in range(4):
        t = DAT + 4 * w
        A(f"  ds_read_b128 v[{t}:{t+3}], v{RA} offset:{4096*w}")
    A("  s_waitcnt lgkmcnt(4)")
    A(f"  v_max3_f32 v{T0}, v{MW}, v{MW+1}, v{MW+2}")
    A(f"  v_max_f32 v{T0}, v{T0}, v{MW+3}")
    for w in range(4):
        A(f"  v_sub_f32 v{MW+w}, v{MW+w}, v{T0}")
    for w in range(4):
        A(f"  v_exp_f32 v{MW+w}, v{MW+w}")
    A("  s_waitcnt lgkmcnt(0)")
    for e in range(4):
        A(f"  v_mul_f32{'_e64' if e < e64 else ''} v{O+e}, v{MW}, v{DAT+e}")
    A(f"  v_mul_f32 v{T1}, v{MW}, v{LW}")
    for w in range(1, 4):
        for e in range(4):
            A(f"  v_fmac_f32 v{O+e}, v{MW+w}, v{DAT+4*w+e}")
        A(f"  v_fmac_f32 v{T1}, v{MW+w}, v{LW+w}")
    for e in range(4):
        A(f"  v_mov_b32 v{U+e}, v{O+e}")
    A("  s_nop 0")
    for e in range(4):
        A(f"  v_permlane32_swap_b32 v{U+e}, v{O+e}")
    for e in range(4):
        A(f"  v_add_f32 v{O+e}, v{O+e}, v{U+e}")
    A("  s_mov_b32 exec_lo, 0")
    A(f"  v_mov_b32 v{O}, v{T0}")
    A(f"  v_mov_b32 v{O+1}, v{T1}")
    A("  s_mov_b32 exec_lo, -1")
    A("  s_mov_b32 exec_hi, 1")
    A(f"  buffer_store_dwordx4 v[{O}:{O+3}], v{PUB}, {WSRD}, s{sREC} offen sc1")
    A(f"  s_cmp_lg_u32 s{sW}, 0")
    A("  s_waitcnt vmcnt(0)")
    A("  s_barrier")
    pfi = f"  buffer_load_dwordx4 v[{DAT}:{DAT+3}], v{PUB}, {WSRD}, s{sREC} offen sc1"
    A("  s_cbranch_scc1 L_wait0")
    A("  s_mov_b64 exec, 1")
    A(f"  global_atomic_add v{CNT}, v{DBGO}, v{ONE}, s[20:21] sc0 sc1")
    A("  s_mov_b32 exec_lo, -1")
    A("  s_mov_b32 exec_hi, 1")
    A(pfi)
    A("  s_mov_b64 exec, 1")
    A("  s_waitcnt vmcnt(1)")
    A(f"  ds_write_b32 v{FLG}, v{CNT}")
    A("  s_waitcnt lgkmcnt(0)")
    A("  s_branch L_wait")
    for _ in range(padB): A("  s_nop 0")
    A("L_wait0:")
    A(pfi)
    A("L_wait:")
    A("  s_mov_b64 exec, -1")
    A("  s_barrier")
    A(f"  ds_read_b32 v{CNT}, v{FLG}")
    A("  s_waitcnt lgkmcnt(0)")
    A(f"  v_readfirstlane_b32 s{sT}, v{CNT}")
    A(f"  s_cmp_lg_u32 s{sT}, 31")
    A("  s_cbranch_scc1 L_done")
    A("L_final:")
    F = S
    A(f"  buffer_load_dwordx2 v[{F}:{F+1}], v{MLO}, {WSRD}, s{sHB} offen sc1")
    def dl(k):
        bb = KB + 4 * k
        A(f"  buffer_load_dwordx4 v[{bb}:{bb+3}], v{POL}, {WSRD}, s{sHB} offen sc1")
        if k < 15:
            A(f"  s_add_u32 s{sHB}, s{sHB}, 4096")
    for k in range(8): dl(k)
    for e in range(4):
        A(f"  v_mov_b32 v{PA+e}, 0")
    A(f"  s_waitcnt vmcnt(8)")
    for k in range(8, 16): dl(k)
    A(f"  v_max_f32_dpp v{T0}, v{F}, v{F} row_ror:8 {DPPF}")
    for sh in (4, 2, 1):
        A("  s_nop 1")
        A(f"  v_max_f32_dpp v{T0}, v{T0}, v{T0} row_ror:{sh} {DPPF}")
    A(f"  v_mov_b32 v{T1}, v{T0}")
    A("  s_nop 1")
    A(f"  v_permlane32_swap_b32 v{T1}, v{T0}")
    A(f"  v_max_f32 v{T0}, v{T0}, v{T1}")
    A(f"  v_sub_f32 v{F}, v{F}, v{T0}")
    A(f"  v_exp_f32 v{F}, v{F}")
    A("  s_nop 0")
    A(f"  v_mul_f32 v{T0}, v{F}, v{F+1}")
    red = [f"  v_add_f32_dpp v{T0}, v{T0}, v{T0} row_ror:{sh} {DPPF}" for sh in (8, 4, 2, 1)]
    red += [f"  v_mov_b32 v{T1}, v{T0}", f"  v_permlane32_swap_b32 v{T1}, v{T0}", f"  v_add_f32 v{T0}, v{T0}, v{T1}", f"  v_rcp_f32 v{T0}, v{T0}"]
    for k in range(16):
        bb = KB + 4 * k
        A(f"  s_waitcnt vmcnt({15-k})")
        for e in range(4):
            A(f"  v_fmac_f32_dpp v{PA+e}, v{F}, v{bb+e} row_newbcast:{k} {DPPF}")
        if red:
            A(red.pop(0))
    for e in range(4):
        A(f"  v_mov_b32 v{VS+e}, v{PA+e}")
    A("  s_nop 0")
    for e in range(4):
        A(f"  v_permlane32_swap_b32 v{VS+e}, v{PA+e}")
    for e in range(4):
        A(f"  v_add_f32 v{PA+e}, v{PA+e}, v{VS+e}")
    for e in range(4):
        A(f"  v_mul_f32 v{PA+e}, v{PA+e}, v{T0}")
    A(f"  v_cvt_pk_bf16_f32 v{PA}, v{PA}, v{PA+1}")
    A(f"  v_cvt_pk_bf16_f32 v{PA+1}, v{PA+2}, v{PA+3}")
    A("  s_mov_b32 exec_hi, 0")
    A(f"  global_store_dwordx2 v{OUTO}, v[{PA}:{PA+1}], s[18:19]")
    A("L_done:")
    if stamp:
        A("  s_mov_b64 exec, -1")
        A("  s_waitcnt vmcnt(0)")
        A("  s_memrealtime s[64:65]")
        A("  s_getreg_b32 s66, hwreg(HW_REG_XCC_ID)")
        A("  s_waitcnt lgkmcnt(0)")
        A("  v_mov_b32 v16, s60"); A("  v_mov_b32 v17, s64"); A("  v_mov_b32 v18, s66"); A("  v_mov_b32 v19, s62")
        A(f"  s_lshl_b32 s{sT}, s2, 2")
        A(f"  s_add_u32 s{sT}, s{sT}, s{sW}")
        A(f"  s_lshl_b32 s{sT}, s{sT}, 5")
        A(f"  s_add_u32 s{sT}, s{sT}, {536870912 - 262144}")
        A(f"  v_mov_b32 v1, s{sT}")
        A("  v_mov_b32 v20, s72"); A("  v_mov_b32 v21, s74"); A("  v_mov_b32 v22, s76"); A("  v_mov_b32 v23, s76")
        A("  s_mov_b64 exec, 1")
        A("  global_store_dwordx4 v1, v[16:19], s[22:23]")
        A("  global_store_dwordx4 v1, v[20:23], s[22:23] offset:16")
    A("L_end:")
    A("  s_endpgm")
    A('.section .rodata,"a"'); A(".p2align 6")
    A(f".amdhsa_kernel {NAME}_kernel")
    A(f"  .amdhsa_next_free_vgpr 256"); A(f"  .amdhsa_next_free_sgpr {80 if stamp else 56}"); A(f"  .amdhsa_accum_offset 256")
    A("  .amdhsa_group_segment_fixed_size 0"); A("  .amdhsa_kernarg_size 80"); A("  .amdhsa_user_sgpr_count 2")
    A("  .amdhsa_user_sgpr_kernarg_segment_ptr 1"); A("  .amdhsa_system_sgpr_workgroup_id_x 1")
    A(".end_amdhsa_kernel")
    return "\n".join(L) + "\n"

def addrs(txt):
    import subprocess, re, tempfile, os
    d = tempfile.mkdtemp()
    open(d + "/a.s", "w").write(txt)
    subprocess.run(["clang", "-x", "assembler", "-target", "amdgcn-amd-amdhsa", "-mcpu=gfx950", "-c", d + "/a.s", "-o", d + "/a.o"], check=True)
    o = subprocess.run(["llvm-objdump", "-t", d + "/a.o"], capture_output=True, text=True).stdout
    return {m.group(2): int(m.group(1), 16) for m in re.finditer(r"^([0-9a-f]+) .*\s(L_\w+)$", o, re.M)}

def gen(stamp=False, aA=0, aB=24, mod=64, e64=0):
    kw = dict(stamp=stamp, e64=e64)
    for key, lab, want in (("padL", "L_merge", aA), ("padB", "L_final", aB)):
        if want is not None:
            ad = addrs(gen0(**kw))[lab]
            kw[key] = ((want - ad) % mod) // 4
    return gen0(**kw)

if __name__ == "__main__":
    out = sys.argv[1]
    kw = eval("dict(" + (sys.argv[2] if len(sys.argv) > 2 else "") + ")")
    open(out, "w").write(gen(**kw))
```
